```python
import torch

def _softmax(x, axis=-1):
    return torch.softmax(x, dim=axis)

def _gelu(x):
    return torch.nn.functional.gelu(x, approximate='tanh')

def _silu(x):
    return torch.nn.functional.silu(x)

def _sigmoid(x):
    return torch.sigmoid(x)

def _layernorm(x, axis=-1, eps=1e-05):
    m = x.mean(dim=axis, keepdim=True)
    v = x.var(dim=axis, keepdim=True, unbiased=False)
    return (x - m) / torch.sqrt(v + eps)

def _scatter_add(tgt, idx, src, axis=0):
    return tgt.clone().index_add_(axis, idx, src)

def _segment_sum(src, seg, n):
    out = torch.zeros((n,) + src.shape[1:], dtype=src.dtype)
    return out.index_add_(0, seg, src)

def _pad(x, pw):
    flat = tuple((v for pair in reversed(pw) for v in pair))
    return torch.nn.functional.pad(x, flat)
kernel_name = 'standalone__tensor_product_equiv_equiformer__graph'

def setup_inputs():

    _w = lambda a: (lambda t: t.to(torch.bfloat16) if t.is_floating_point() else t)(torch.as_tensor(a))
    N, deg, C, De = (10000, 64, 64, max(16, 1))
    E = N * deg
    src = (lambda lo, hi, *s: torch.randint(lo, hi, s))(0, N, E).to(torch.int64)
    dst = (lambda lo, hi, *s: torch.randint(lo, hi, s))(0, N, E).to(torch.int64)
    rvec = (lambda *s: torch.randn(*s, dtype=torch.bfloat16) * 0.05)(E, 3).to(float)
    rn = (torch.linalg.norm(rvec, dim=-1, keepdim=True) + 1e-06).to(float)
    rhat = (rvec / rn).to(float)
    eps = torch.zeros((3, 3, 3), dtype=float)
    eps[0, 1, 2] = eps[1, 2, 0] = eps[2, 0, 1] = 1.0
    eps[0, 2, 1] = eps[2, 1, 0] = eps[1, 0, 2] = -1.0
    return {'x': _w((lambda *s: torch.randn(*s, dtype=torch.bfloat16) * 0.2)(N, 4 * C).to(float)), 'rhat': _w(rhat), 'e_attr': _w((lambda *s: torch.randn(*s, dtype=torch.bfloat16) * 0.2)(E, De).to(float)), 'src': _w(src), 'dst': _w(dst), 'w_rad': _w((lambda *s: torch.randn(*s, dtype=torch.bfloat16) * 0.2)(De, 5 * C).to(float)), 'w_si0': _w((lambda *s: torch.randn(*s, dtype=torch.bfloat16) * 0.2)(2 * C, C).to(float)), 'w_si1': _w((lambda *s: torch.randn(*s, dtype=torch.bfloat16) * 0.05)(3 * C, C).to(float)), 'cg_eps': _w(eps)}

def reference(x, rhat, e_attr, src, dst, w_rad, w_si0, w_si1, cg_eps):
    N = x.shape[0]
    C = w_si0.shape[1]
    E = rhat.shape[0]
    x0 = x[:, :C].clone()
    x1 = x[:, C:].reshape(N, 3, C)
    R = (e_attr @ w_rad).reshape(E, 5, C)
    f0 = x0[src]
    f1 = x1[src]
    Y1 = rhat
    p00_0 = f0 * R[:, 0, :]
    p11_0 = torch.einsum('ejc,ej->ec', f1, Y1) * R[:, 1, :]
    p01_1 = torch.einsum('ec,ej->ejc', f0, Y1) * R[:, 2, :][:, None, :]
    p10_1 = f1 * R[:, 3, :][:, None, :]
    p11_1 = torch.einsum('ijk,ekc,ej->eic', cg_eps, f1, Y1) * R[:, 4, :][:, None, :]
    m0 = torch.concatenate([p00_0, p11_0], axis=-1) @ w_si0
    m1 = torch.einsum('ejp,pc->ejc', torch.concatenate([p01_1, p10_1, p11_1], axis=-1), w_si1)
    agg0 = _segment_sum(m0, dst, N)
    agg1 = _segment_sum(m1.reshape(E, 3 * C), dst, N).reshape(N, 3, C)
    gate = _sigmoid(agg0)
    out1 = agg1 * gate[:, None, :]
    return torch.concatenate([agg0, out1.reshape(N, 3 * C)], axis=-1)
```

```python
import sys

N = 10000
E = 640000
NB = 20
NBINS = 500
G = 64
CHUNK = 10000
CAP = 1536

WS_H = 0
WS_BASE = 0x20000
WS_FRAD = 0x21000
WS_FW0 = 0x24000
WS_FW1 = 0x28000
WS_REC = 0x100000
WS_USED = WS_REC + E * 16

L_CNT = 0
L_P = 256
L_REC = L_P + NB * 2816
L_TOT = L_REC + CAP * 16

out = []


def A(s):
    out.append("    " + s)


def L(s):
    out.append(s + ":")


def C(s):
    out.append("    ; " + s)


def srd(base, ptr, nbytes):
    A(f"s_mov_b32 s{base}, s{ptr}")
    A(f"s_mov_b32 s{base+1}, s{ptr+1}")
    A(f"s_mov_b32 s{base+2}, {nbytes}")
    A(f"s_mov_b32 s{base+3}, 0x00020000")


def kd(name, vgpr, sgpr=102):
    out.append('.section .rodata,"a"')
    out.append(".p2align 6")
    out.append(f".amdhsa_kernel {name}")
    out.append(f"  .amdhsa_next_free_vgpr {vgpr}")
    out.append(f"  .amdhsa_next_free_sgpr {sgpr}")
    out.append(f"  .amdhsa_accum_offset {((vgpr + 3) // 4) * 4}")
    out.append("  .amdhsa_group_segment_fixed_size 0")
    out.append("  .amdhsa_kernarg_size 96")
    out.append("  .amdhsa_user_sgpr_count 2")
    out.append("  .amdhsa_user_sgpr_kernarg_segment_ptr 1")
    out.append("  .amdhsa_system_sgpr_workgroup_id_x 1")
    out.append(".end_amdhsa_kernel")
    out.append(".text")


def kstart(name):
    out.append(f".globl {name}")
    out.append(".p2align 8")
    out.append(f".type {name},@function")
    L(name)


def gen_k1():
    kstart("tp_hist_kernel")
    A(f"s_cmp_ge_u32 s2, {G + 4}")
    A("s_cbranch_scc1 K1_END")
    A(f"s_cmp_ge_u32 s2, {G}")
    A("s_cbranch_scc1 K1_PREP")
    A("s_load_dwordx2 s[20:21], s[0:1], 32")
    A("s_load_dwordx2 s[22:23], s[0:1], 88")
    A("s_waitcnt lgkmcnt(0)")
    srd(4, 20, E * 4)
    srd(8, 22, G * 2048)
    A("v_lshlrev_b32 v1, 2, v0")
    A("v_mov_b32 v2, 0")
    A("v_cmp_gt_u32 vcc, 512, v0")
    A("s_and_saveexec_b64 s[12:13], vcc")
    A("ds_write_b32 v1, v2")
    A("s_mov_b64 exec, s[12:13]")
    A("s_waitcnt lgkmcnt(0)")
    A("s_barrier")
    A(f"s_mul_i32 s14, s2, {CHUNK * 4}")
    A("v_add_u32 v3, s14, v1")
    for k in range(10):
        A(f"v_add_u32 v4, {4096 * k}, v3")
        A(f"buffer_load_dword v{10 + k}, v4, s[4:7], 0 offen")
    A("v_mov_b32 v5, 1")
    for k in range(10):
        A(f"s_waitcnt vmcnt({9 - k})")
        if k == 9:
            A(f"v_cmp_gt_u32 vcc, {CHUNK - 9216}, v0")
            A("s_and_saveexec_b64 s[12:13], vcc")
        A(f"v_mul_u32_u24 v6, 52429, v{10 + k}")
        A("v_lshrrev_b32 v6, 20, v6")
        A(f"v_min_u32 v6, {NBINS - 1}, v6")
        A("v_lshlrev_b32 v6, 2, v6")
        A("ds_add_u32 v6, v5")
    A("s_mov_b64 exec, s[12:13]")
    A("s_waitcnt lgkmcnt(0)")
    A("s_barrier")
    A(f"v_cmp_gt_u32 vcc, {NBINS}, v0")
    A("s_and_saveexec_b64 s[12:13], vcc")
    A("ds_read_b32 v2, v1")
    A("s_lshl_b32 s14, s2, 11")
    A("s_waitcnt lgkmcnt(0)")
    A("buffer_store_dword v2, v1, s[8:11], s14 offen")
    A("s_branch K1_END")

    L("K1_PREP")
    A("s_load_dwordx2 s[20:21], s[0:1], 40")
    A("s_load_dwordx2 s[22:23], s[0:1], 48")
    A("s_load_dwordx2 s[24:25], s[0:1], 56")
    A("s_load_dwordx2 s[26:27], s[0:1], 88")
    A("s_waitcnt lgkmcnt(0)")
    srd(4, 20, 16 * 320 * 2)
    srd(8, 22, 128 * 64 * 2)
    srd(12, 24, 192 * 64 * 2)
    srd(16, 26, WS_REC)
    A(f"s_sub_u32 s3, s2, {G}")
    A("s_lshl_b32 s3, s3, 10")
    A("v_add_u32 v1, s3, v0")
    A("v_and_b32 v2, 63, v1")
    A("v_and_b32 v3, 15, v2")
    A("v_lshrrev_b32 v4, 4, v2")
    A("v_cmp_gt_u32 vcc, 1280, v1")
    A("s_and_saveexec_b64 s[28:29], vcc")
    A("v_lshrrev_b32 v5, 6, v1")
    A("v_lshrrev_b32 v6, 2, v5")
    A("v_and_b32 v7, 3, v5")
    A("v_lshlrev_b32 v8, 6, v6")
    A("v_lshl_add_u32 v8, v3, 2, v8")
    A("v_add_u32 v8, v8, v7")
    A("v_lshlrev_b32 v9, 2, v4")
    A("v_mul_u32_u24 v9, 640, v9")
    A("v_lshl_add_u32 v9, v8, 1, v9")
    for kk in range(4):
        A(f"buffer_load_ushort v{10 + kk}, v9, s[4:7], 0 offen offset:{640 * kk}")
    A("s_waitcnt vmcnt(0)")
    A("v_lshl_or_b32 v10, v11, 16, v10")
    A("v_lshl_or_b32 v11, v13, 16, v12")
    A("v_lshlrev_b32 v14, 3, v1")
    A(f"v_add_u32 v14, {WS_FRAD}, v14")
    A("buffer_store_dwordx2 v[10:11], v14, s[16:19], 0 offen")
    A("s_mov_b64 exec, s[28:29]")
    A("v_subrev_u32 v5, 1280, v1")
    A("v_cmp_gt_u32 vcc, 1024, v5")
    A("s_and_saveexec_b64 s[28:29], vcc")
    A("v_lshrrev_b32 v6, 8, v5")
    A("v_bfe_u32 v7, v5, 6, 2")
    A("v_lshlrev_b32 v8, 5, v7")
    A("v_lshl_add_u32 v8, v4, 3, v8")
    A("v_lshlrev_b32 v8, 7, v8")
    A("v_lshl_add_u32 v9, v6, 4, v3")
    A("v_lshl_add_u32 v8, v9, 1, v8")
    for kk in range(8):
        A(f"buffer_load_ushort v{10 + kk}, v8, s[8:11], 0 offen offset:{128 * kk}")
    A("s_waitcnt vmcnt(0)")
    for p in range(4):
        A(f"v_lshl_or_b32 v{20 + p}, v{11 + 2 * p}, 16, v{10 + 2 * p}")
    A("v_lshlrev_b32 v14, 4, v5")
    A(f"v_add_u32 v14, {WS_FW0}, v14")
    A("buffer_store_dwordx4 v[20:23], v14, s[16:19], 0 offen")
    A("s_mov_b64 exec, s[28:29]")
    A("v_subrev_u32 v5, 2304, v1")
    A("v_cmp_gt_u32 vcc, 1536, v5")
    A("s_and_saveexec_b64 s[28:29], vcc")
    A("v_lshrrev_b32 v7, 8, v5")
    A("v_bfe_u32 v6, v5, 6, 2")
    A("v_lshlrev_b32 v8, 5, v7")
    A("v_lshl_add_u32 v8, v4, 3, v8")
    A("v_lshlrev_b32 v8, 7, v8")
    A("v_lshl_add_u32 v9, v6, 4, v3")
    A("v_lshl_add_u32 v8, v9, 1, v8")
    for kk in range(8):
        A(f"buffer_load_ushort v{10 + kk}, v8, s[12:15], 0 offen offset:{128 * kk}")
    A("s_waitcnt vmcnt(0)")
    for p in range(4):
        A(f"v_lshl_or_b32 v{20 + p}, v{11 + 2 * p}, 16, v{10 + 2 * p}")
    A("v_lshlrev_b32 v14, 4, v5")
    A(f"v_add_u32 v14, {WS_FW1}, v14")
    A("buffer_store_dwordx4 v[20:23], v14, s[16:19], 0 offen")
    A("s_mov_b64 exec, s[28:29]")
    L("K1_END")
    A("s_endpgm")
    kd("tp_hist_kernel", 32)


def gen_k2():
    kstart("tp_scatter_kernel")
    A(f"s_cmp_ge_u32 s2, {G}")
    A("s_cbranch_scc1 K2_END")
    A("s_load_dwordx2 s[20:21], s[0:1], 32")
    A("s_load_dwordx2 s[22:23], s[0:1], 24")
    A("s_load_dwordx2 s[24:25], s[0:1], 8")
    A("s_load_dwordx2 s[26:27], s[0:1], 88")
    A("s_waitcnt lgkmcnt(0)")
    srd(4, 20, E * 4)
    srd(8, 22, E * 4)
    srd(12, 24, E * 6)
    srd(16, 26, WS_USED)
    A("v_lshlrev_b32 v1, 2, v0")
    A("v_mov_b32 v2, 0")
    A("v_mov_b32 v3, 0")
    A("v_cmp_gt_u32 vcc, 512, v0")
    A("s_and_saveexec_b64 s[28:29], vcc")
    A("s_cbranch_execz K2_SKIPA")
    for bt in range(G // 16):
        for q in range(16):
            A(f"s_mov_b32 s30, {(bt * 16 + q) * 2048}")
            A(f"buffer_load_dword v{10 + q}, v1, s[16:19], s30 offen")
        A("s_waitcnt vmcnt(0)")
        for q in range(16):
            gp = bt * 16 + q
            A(f"s_cmp_lg_u32 s2, {gp}")
            A(f"s_cbranch_scc1 K2_NS{gp}")
            A("v_mov_b32 v3, v2")
            L(f"K2_NS{gp}")
            A(f"v_add_u32 v2, v2, v{10 + q}")
    A(f"v_cmp_gt_u32 vcc, {NBINS}, v0")
    A("s_nop 1")
    A("v_cndmask_b32 v2, 0, v2, vcc")
    A("v_cndmask_b32 v3, 0, v3, vcc")
    A("v_mov_b32 v4, v2")
    A("s_nop 1")
    for sh in (1, 2, 4, 8):
        A(f"v_add_u32_dpp v4, v4, v4 row_shr:{sh} row_mask:0xf bank_mask:0xf bound_ctrl:0")
        A("s_nop 1")
    A("v_add_u32_dpp v4, v4, v4 row_bcast:15 row_mask:0xa bank_mask:0xf")
    A("s_nop 1")
    A("v_add_u32_dpp v4, v4, v4 row_bcast:31 row_mask:0xc bank_mask:0xf")
    A("s_nop 1")
    A("v_readlane_b32 s31, v4, 63")
    A("v_lshrrev_b32 v5, 6, v0")
    A("v_lshlrev_b32 v5, 2, v5")
    A("v_mov_b32 v6, s31")
    A("ds_write_b32 v5, v6 offset:4096")
    L("K2_SKIPA")
    A("s_mov_b64 exec, s[28:29]")
    A("s_waitcnt lgkmcnt(0)")
    A("s_barrier")
    A("v_cmp_gt_u32 vcc, 512, v0")
    A("s_and_saveexec_b64 s[28:29], vcc")
    A("s_cbranch_execz K2_SKIPB")
    A("v_mov_b32 v5, 0")
    A("ds_read_b128 v[8:11], v5 offset:4096")
    A("ds_read_b128 v[12:15], v5 offset:4112")
    A("v_lshrrev_b32 v6, 6, v0")
    A("s_nop 0")
    A("v_readfirstlane_b32 s32, v6")
    A("s_waitcnt lgkmcnt(0)")
    A("s_mov_b32 s33, 0")
    for m in range(8):
        A(f"v_readfirstlane_b32 s34, v{8 + m}")
        A("s_nop 3")
        A(f"s_cmp_gt_u32 s32, {m}")
        A("s_cselect_b32 s34, s34, 0")
        A("s_add_u32 s33, s33, s34")
    A("v_sub_u32 v4, v4, v2")
    A("v_add_u32 v4, s33, v4")
    A("v_add_u32 v7, v4, v3")
    A("ds_write_b32 v1, v7")
    A("s_cmp_lg_u32 s2, 0")
    A("s_cbranch_scc1 K2_SKIPB")
    A(f"v_cmp_gt_u32 vcc, {NBINS}, v0")
    A("s_and_saveexec_b64 s[34:35], vcc")
    A(f"v_add_u32 v5, {WS_BASE}, v1")
    A("buffer_store_dword v4, v5, s[16:19], 0 offen")
    A(f"v_cmp_eq_u32 vcc, {NBINS - 1}, v0")
    A("s_and_saveexec_b64 s[36:37], vcc")
    A("v_add_u32 v4, v4, v2")
    A("buffer_store_dword v4, v5, s[16:19], 0 offen offset:4")
    L("K2_SKIPB")
    A("s_mov_b64 exec, s[28:29]")
    A("s_waitcnt vmcnt(0) lgkmcnt(0)")
    A("s_barrier")
    A(f"s_mul_i32 s30, s2, {CHUNK}")
    A("v_mov_b32 v5, 1")
    for k in range(10):
        if k == 9:
            A(f"v_cmp_gt_u32 vcc, {CHUNK - 9216}, v0")
            A("s_and_saveexec_b64 s[28:29], vcc")
        A(f"v_add_u32 v6, {1024 * k}, v0")
        A("v_add_u32 v6, s30, v6")
        A("v_lshlrev_b32 v7, 2, v6")
        A("buffer_load_dword v8, v7, s[4:7], 0 offen")
        A("buffer_load_dword v9, v7, s[8:11], 0 offen")
        A("v_mul_u32_u24 v10, 6, v6")
        A("v_and_b32 v11, 0xfffffffc, v10")
        A("buffer_load_dwordx2 v[12:13], v11, s[12:15], 0 offen")
        A("v_and_b32 v10, 3, v10")
        A("v_lshlrev_b32 v10, 3, v10")
        A("s_waitcnt vmcnt(0)")
        A("v_mul_u32_u24 v14, 52429, v8")
        A("v_lshrrev_b32 v14, 20, v14")
        A(f"v_min_u32 v14, {NBINS - 1}, v14")
        A(f"v_mul_u32_u24 v15, {NB}, v14")
        A("v_sub_u32 v15, v8, v15")
        A("v_and_b32 v15, 31, v15")
        A("v_lshlrev_b32 v14, 2, v14")
        A("ds_add_rtn_u32 v16, v14, v5")
        A("v_lshl_or_b32 v20, v6, 5, v15")
        A("v_mov_b32 v21, v9")
        A("v_lshrrev_b64 v[12:13], v10, v[12:13]")
        A("v_mov_b32 v22, v12")
        A("v_and_b32 v23, 0xffff, v13")
        A("s_waitcnt lgkmcnt(0)")
        A("v_lshlrev_b32 v16, 4, v16")
        A(f"v_add_u32 v16, {WS_REC}, v16")
        A("buffer_store_dwordx4 v[20:23], v16, s[16:19], 0 offen")
        A("s_nop 1")
    L("K2_END")
    A("s_endpgm")
    kd("tp_scatter_kernel", 32)


B0 = 16
ACC = 56
D0 = 100
X0 = [140, 172]
AR = [204, 206]
YP = [208, 216]
YU = 224
T0 = 236
V_I16 = 1
V_Q4 = 2
V_KG8 = 3
V_I8 = 4
V_PB = 5
MASK = [40, 42]


def acc(j, t):
    return ACC + j * 11 + t


def load_tile(st):
    t = T0
    A(f"v_add_u32 v{t}, s50, v{V_I16}")
    A(f"v_cmp_gt_u32 s[{MASK[st]}:{MASK[st] + 1}], s51, v{t}")
    A("s_sub_u32 s52, s51, 1")
    A(f"v_min_u32 v{t}, s52, v{t}")
    A(f"v_lshlrev_b32 v{t}, 4, v{t}")
    A(f"ds_read_b32 v{t + 1}, v{t} offset:{L_REC}")
    A(f"v_add_u32 v{t + 2}, s50, v{V_Q4}")
    for r in range(4):
        A(f"v_add_u32 v{t + 3}, {r}, v{t + 2}")
        A(f"v_min_u32 v{t + 3}, s52, v{t + 3}")
        A(f"v_lshlrev_b32 v{t + 3}, 4, v{t + 3}")
        A(f"ds_read_b64 v[{t + 4 + 2 * r}:{t + 5 + 2 * r}], v{t + 3} offset:{L_REC}")
        A(f"ds_read_b64 v[{YP[st] + 2 * r}:{YP[st] + 2 * r + 1}], v{t + 3} offset:{L_REC + 8}")
    A("s_waitcnt lgkmcnt(0)")
    A(f"v_lshrrev_b32 v{t + 1}, 5, v{t + 1}")
    A(f"v_lshlrev_b32 v{t + 1}, 5, v{t + 1}")
    A(f"v_add_u32 v{t + 1}, v{t + 1}, v{V_KG8}")
    A(f"buffer_load_dwordx2 v[{AR[st]}:{AR[st] + 1}], v{t + 1}, s[8:11], 0 offen")
    for r in range(4):
        A(f"v_lshlrev_b32 v{t + 12}, 9, v{t + 5 + 2 * r}")
        A(f"v_add_u32 v{t + 12 + r}, v{t + 12}, v{V_I8}")
        for s in range(4):
            xr = X0[st] + r * 8 + s * 2
            A(f"buffer_load_dwordx2 v[{xr}:{xr + 1}], v{t + 12 + r}, s[4:7], 0 offen offset:{128 * s}")


def comp_tile(st):
    a = AR[st]
    A(f"v_cndmask_b32 v{a}, 0, v{a}, s[{MASK[st]}:{MASK[st] + 1}]")
    A(f"v_cndmask_b32 v{a + 1}, 0, v{a + 1}, s[{MASK[st]}:{MASK[st] + 1}]")
    for r in range(4):
        A(f"v_lshlrev_b32 v{YU + 3 * r}, 16, v{YP[st] + 2 * r}")
        A(f"v_and_b32 v{YU + 3 * r + 1}, 0xffff0000, v{YP[st] + 2 * r}")
        A(f"v_lshlrev_b32 v{YU + 3 * r + 2}, 16, v{YP[st] + 2 * r + 1}")
    for half in range(2):
        for k5 in range(5):
            for jj in range(2):
                d = D0 + (k5 * 2 + jj) * 4
                b = B0 + (k5 * 4 + 2 * half + jj) * 2
                A(f"v_mfma_f32_16x16x16_bf16 v[{d}:{d + 3}], v[{a}:{a + 1}], v[{b}:{b + 1}], 0")
        A("s_nop 7")
        for r in range(4):
            Yx, Yy, Yz = YU + 3 * r, YU + 3 * r + 1, YU + 3 * r + 2
            for jj in range(2):
                j = 2 * half + jj
                f0, fx, fy, fz, tt, uu = T0 + 14, T0 + 15, T0 + 16, T0 + 17, T0 + 18, T0 + 19
                for s, dst in enumerate((f0, fx, fy, fz)):
                    xr = X0[st] + r * 8 + s * 2 + half
                    if jj == 0:
                        A(f"v_lshlrev_b32 v{dst}, 16, v{xr}")
                    else:
                        A(f"v_and_b32 v{dst}, 0xffff0000, v{xr}")

                def R(k5):
                    return D0 + (k5 * 2 + jj) * 4 + r
                A(f"v_fmac_f32 v{acc(j, 0)}, v{f0}, v{R(0)}")
                A(f"v_mul_f32 v{tt}, v{fx}, v{Yx}")
                A(f"v_fmac_f32 v{tt}, v{fy}, v{Yy}")
                A(f"v_fmac_f32 v{tt}, v{fz}, v{Yz}")
                A(f"v_fmac_f32 v{acc(j, 1)}, v{tt}, v{R(1)}")
                A(f"v_mul_f32 v{uu}, v{f0}, v{R(2)}")
                A(f"v_fmac_f32 v{acc(j, 2)}, v{uu}, v{Yx}")
                A(f"v_fmac_f32 v{acc(j, 3)}, v{uu}, v{Yy}")
                A(f"v_fmac_f32 v{acc(j, 4)}, v{uu}, v{Yz}")
                A(f"v_fmac_f32 v{acc(j, 5)}, v{fx}, v{R(3)}")
                A(f"v_fmac_f32 v{acc(j, 6)}, v{fy}, v{R(3)}")
                A(f"v_fmac_f32 v{acc(j, 7)}, v{fz}, v{R(3)}")
                A(f"v_mul_f32 v{tt}, v{fz}, v{Yy}")
                A(f"v_fma_f32 v{tt}, -v{fy}, v{Yz}, v{tt}")
                A(f"v_fmac_f32 v{acc(j, 8)}, v{tt}, v{R(4)}")
                A(f"v_mul_f32 v{tt}, v{fx}, v{Yz}")
                A(f"v_fma_f32 v{tt}, -v{fz}, v{Yx}, v{tt}")
                A(f"v_fmac_f32 v{acc(j, 9)}, v{tt}, v{R(4)}")
                A(f"v_mul_f32 v{tt}, v{fy}, v{Yx}")
                A(f"v_fma_f32 v{tt}, -v{fx}, v{Yy}, v{tt}")
                A(f"v_fmac_f32 v{acc(j, 10)}, v{tt}, v{R(4)}")


TERM_OFF = [0, 256, 512, 512 + 768, 512 + 1536, 512 + 256, 512 + 768 + 256, 512 + 1536 + 256,
            512 + 512, 512 + 768 + 512, 512 + 1536 + 512]


def flush(tag):
    A("s_mul_i32 s54, s53, 2816")
    A(f"v_add_u32 v{T0}, s54, v{V_PB}")
    for j in range(4):
        for t in range(11):
            A(f"ds_add_f32 v{T0}, v{acc(j, t)} offset:{L_P + TERM_OFF[t] + 4 * j}")
    for j in range(4):
        for t in range(11):
            A(f"v_mov_b32 v{acc(j, t)}, 0")


def gen_main():
    kstart("tp_main_kernel")
    A(f"s_cmp_ge_u32 s2, {NBINS}")
    A("s_cbranch_scc1 M_END")
    A("s_load_dwordx2 s[20:21], s[0:1], 0")
    A("s_load_dwordx2 s[22:23], s[0:1], 16")
    A("s_load_dwordx2 s[24:25], s[0:1], 88")
    A("s_load_dwordx2 s[26:27], s[0:1], 72")
    A("s_waitcnt lgkmcnt(0)")
    srd(4, 20, N * 512)
    srd(8, 22, E * 32)
    srd(12, 24, WS_USED)
    srd(16, 26, N * 512)
    A("s_lshl_b32 s3, s2, 2")
    A(f"s_add_u32 s3, s3, {WS_BASE}")
    A("s_load_dwordx2 s[28:29], s[24:25], s3")
    A("v_and_b32 v6, 63, v0")
    A(f"v_and_b32 v{V_I16}, 15, v6")
    A("v_lshrrev_b32 v7, 4, v6")
    A(f"v_lshlrev_b32 v{V_Q4}, 2, v7")
    A(f"v_lshlrev_b32 v{V_KG8}, 3, v7")
    A(f"v_lshlrev_b32 v{V_I8}, 3, v{V_I16}")
    A(f"v_lshlrev_b32 v{V_PB}, 4, v{V_I16}")
    A("v_lshlrev_b32 v7, 3, v6")
    for t in range(20):
        A(f"v_add_u32 v8, {WS_FRAD + t * 512}, v7")
        A(f"buffer_load_dwordx2 v[{B0 + 2 * t}:{B0 + 2 * t + 1}], v8, s[12:15], 0 offen")
    A("v_lshlrev_b32 v7, 4, v0")
    for q in range(4):
        A(f"v_mov_b32 v{D0 + q}, 0")
    nz = (NB * 2816) // 16
    for k in range(0, (nz + 255) // 256):
        if (k + 1) * 256 > nz:
            A(f"v_cmp_gt_u32 vcc, {nz - k * 256}, v0")
            A("s_and_saveexec_b64 s[30:31], vcc")
        A(f"ds_write_b128 v7, v[{D0}:{D0 + 3}] offset:{L_P + k * 4096}")
    A("s_mov_b64 exec, s[30:31]")
    for j in range(4):
        for t in range(11):
            A(f"v_mov_b32 v{acc(j, t)}, 0")
    A("v_lshrrev_b32 v7, 6, v0")
    A("s_nop 0")
    A("v_readfirstlane_b32 s44, v7")
    A("s_waitcnt lgkmcnt(0)")
    L("M_PASS")
    A("s_sub_u32 s45, s29, s28")
    A(f"s_min_u32 s45, s45, {CAP}")
    A("v_cmp_gt_u32 vcc, 32, v0")
    A("s_and_saveexec_b64 s[30:31], vcc")
    A("v_lshlrev_b32 v7, 2, v0")
    A("v_mov_b32 v8, 0")
    A(f"ds_write_b32 v7, v8 offset:{L_CNT}")
    A("s_mov_b64 exec, s[30:31]")
    A("s_waitcnt lgkmcnt(0)")
    A("s_barrier")
    for k in range(6):
        A(f"v_add_u32 v7, {256 * k}, v0")
        A("v_add_u32 v8, s28, v7")
        A("v_lshlrev_b32 v8, 4, v8")
        A(f"v_add_u32 v8, {WS_REC}, v8")
        A(f"buffer_load_dwordx4 v[{D0 + 4 * k}:{D0 + 4 * k + 3}], v8, s[12:15], 0 offen")
    A("v_mov_b32 v9, 1")
    for k in range(6):
        A(f"s_waitcnt vmcnt({5 - k})")
        A(f"v_add_u32 v7, {256 * k}, v0")
        A("v_cmp_gt_u32 vcc, s45, v7")
        A("s_and_saveexec_b64 s[30:31], vcc")
        A(f"v_and_b32 v8, 31, v{D0 + 4 * k}")
        A("v_lshlrev_b32 v8, 2, v8")
        A(f"ds_add_rtn_u32 v{D0 + 24 + k}, v8, v9 offset:{L_CNT}")
        A("s_mov_b64 exec, s[30:31]")
    A("s_waitcnt lgkmcnt(0)")
    A("s_barrier")
    A("v_and_b32 v7, 31, v0")
    A("v_lshlrev_b32 v7, 2, v7")
    A(f"ds_read_b32 v8, v7 offset:{L_CNT}")
    A("s_waitcnt lgkmcnt(0)")
    A("s_mov_b32 s46, 0")
    A("v_mov_b32 v9, 0")
    for m in range(NB + 1):
        A(f"v_writelane_b32 v9, s46, {m}")
        if m < NB:
            A(f"v_readlane_b32 s47, v8, {m}")
            A("s_nop 3")
            A("s_add_u32 s46, s46, s47")
    for k in range(6):
        A(f"v_and_b32 v10, 31, v{D0 + 4 * k}")
        A("v_lshlrev_b32 v10, 2, v10")
        A("ds_bpermute_b32 v11, v10, v9")
        A(f"v_add_u32 v7, {256 * k}, v0")
        A("v_cmp_gt_u32 vcc, s45, v7")
        A("s_and_saveexec_b64 s[30:31], vcc")
        A("s_waitcnt lgkmcnt(0)")
        A(f"v_add_u32 v11, v11, v{D0 + 24 + k}")
        A("v_lshlrev_b32 v11, 4, v11")
        A(f"ds_write_b128 v11, v[{D0 + 4 * k}:{D0 + 4 * k + 3}] offset:{L_REC}")
        A("s_mov_b64 exec, s[30:31]")
    A("s_waitcnt lgkmcnt(0)")
    A("s_barrier")
    A("s_mul_i32 s48, s44, 5")
    A("s_add_u32 s49, s48, 5")
    L("M_FIND0")
    A("s_cmp_ge_u32 s48, s49")
    A("s_cbranch_scc1 M_WAVEDONE")
    A("v_readlane_b32 s50, v9, s48")
    A("s_add_u32 s47, s48, 1")
    A("v_readlane_b32 s51, v9, s47")
    A("s_nop 3")
    A("s_cmp_lt_u32 s50, s51")
    A("s_cbranch_scc1 M_FOUND0")
    A("s_add_u32 s48, s48, 1")
    A("s_branch M_FIND0")
    L("M_FOUND0")
    load_tile(0)
    A("s_mov_b32 s57, s50")
    A("s_mov_b32 s58, s51")
    A("s_mov_b32 s59, s48")
    for st in range(2):
        nx = 1 - st
        L(f"M_LOOP{st}")
        A("s_add_u32 s50, s57, 16")
        A("s_mov_b32 s51, s58")
        A("s_cmp_lt_u32 s50, s58")
        A(f"s_cbranch_scc1 M_HASNEXT{st}")
        L(f"M_FIND{st}_N")
        A("s_add_u32 s48, s48, 1")
        A("s_cmp_ge_u32 s48, s49")
        A(f"s_cbranch_scc1 M_NONEXT{st}")
        A("v_readlane_b32 s50, v9, s48")
        A("s_add_u32 s47, s48, 1")
        A("v_readlane_b32 s51, v9, s47")
        A("s_nop 3")
        A("s_cmp_lt_u32 s50, s51")
        A(f"s_cbranch_scc0 M_FIND{st}_N")
        L(f"M_HASNEXT{st}")
        load_tile(nx)
        A("s_waitcnt vmcnt(17)")
        A("s_mov_b32 s56, 1")
        A(f"s_branch M_COMP{st}")
        L(f"M_NONEXT{st}")
        A("s_waitcnt vmcnt(0)")
        A("s_mov_b32 s56, 0")
        L(f"M_COMP{st}")
        comp_tile(st)
        A("s_add_u32 s47, s57, 16")
        A("s_cmp_lt_u32 s47, s58")
        A(f"s_cbranch_scc1 M_NOFLUSH{st}")
        A("s_mov_b32 s53, s59")
        flush(f"f{st}")
        L(f"M_NOFLUSH{st}")
        A("s_cmp_eq_u32 s56, 0")
        A("s_cbranch_scc1 M_WAVEDONE")
        A("s_mov_b32 s57, s50")
        A("s_mov_b32 s58, s51")
        A("s_mov_b32 s59, s48")
        if st == 1:
            A("s_branch M_LOOP0")
    L("M_WAVEDONE")
    A("s_waitcnt vmcnt(0) lgkmcnt(0)")
    A("s_barrier")
    A("s_add_u32 s28, s28, s45")
    A("s_cmp_lt_u32 s28, s29")
    A("s_cbranch_scc1 M_PASS")
    A("v_and_b32 v6, 63, v0")
    A("v_lshlrev_b32 v7, 4, v6")
    for s in range(4):
        A(f"s_lshl_b32 s47, s44, 2")
        A(f"s_add_u32 s47, s47, {s}")
        A("s_lshl_b32 s47, s47, 10")
        A(f"s_add_u32 s47, s47, {WS_FW0}")
        A(f"buffer_load_dwordx4 v[{16 + 4 * s}:{19 + 4 * s}], v7, s[12:15], s47 offen")
    for s in range(6):
        A(f"s_lshl_b32 s47, s44, 10")
        A(f"s_add_u32 s47, s47, {WS_FW1 + s * 4096}")
        A(f"buffer_load_dwordx4 v[{32 + 4 * s}:{35 + 4 * s}], v7, s[12:15], s47 offen")
    A("s_waitcnt vmcnt(0)")
    A(f"s_mul_i32 s46, s2, {NB}")
    for tile in range(2):
        A(f"v_add_u32 v7, {16 * tile}, v{V_I16}")
        A(f"v_min_u32 v8, {NB - 1}, v7")
        A("v_mul_u32_u24 v8, 2816, v8")
        A(f"v_lshl_add_u32 v8, v{V_Q4}, 3, v8")
        DA = 56
        for q in range(16):
            A(f"v_mov_b32 v{DA + q}, 0")
        for s in range(4):
            A(f"ds_read_b128 v[100:103], v8 offset:{L_P + 128 * s}")
            A(f"ds_read_b128 v[104:107], v8 offset:{L_P + 128 * s + 16}")
            A("s_waitcnt lgkmcnt(0)")
            for p in range(4):
                A(f"v_cvt_pk_bf16_f32 v{108 + p}, v{100 + 2 * p}, v{101 + 2 * p}")
            A("s_nop 1")
            A(f"v_mfma_f32_16x16x32_bf16 v[{DA}:{DA + 3}], v[{16 + 4 * s}:{19 + 4 * s}], v[108:111], v[{DA}:{DA + 3}]")
        for jx in range(3):
            for s in range(6):
                off = L_P + 512 + jx * 768 + 128 * s
                A(f"ds_read_b128 v[100:103], v8 offset:{off}")
                A(f"ds_read_b128 v[104:107], v8 offset:{off + 16}")
                A("s_waitcnt lgkmcnt(0)")
                for p in range(4):
                    A(f"v_cvt_pk_bf16_f32 v{108 + p}, v{100 + 2 * p}, v{101 + 2 * p}")
                A("s_nop 1")
                d = DA + 4 + 4 * jx
                A(f"v_mfma_f32_16x16x32_bf16 v[{d}:{d + 3}], v[{32 + 4 * s}:{35 + 4 * s}], v[108:111], v[{d}:{d + 3}]")
        A("s_nop 7")
        A("s_nop 3")
        A(f"v_cmp_gt_u32 vcc, {NB}, v7")
        A("s_and_saveexec_b64 s[30:31], vcc")
        A("s_mov_b32 s47, 0xbfb8aa3b")
        for r in range(4):
            A(f"v_mul_f32 v{112 + r}, s47, v{DA + r}")
            A(f"v_exp_f32 v{112 + r}, v{112 + r}")
            A("s_nop 0")
            A(f"v_add_f32 v{112 + r}, 1.0, v{112 + r}")
            A(f"v_rcp_f32 v{112 + r}, v{112 + r}")
            A("s_nop 0")
        A("v_add_u32 v9, s46, v7")
        A("v_lshlrev_b32 v9, 9, v9")
        A("s_lshl_b32 s47, s44, 5")
        A("v_add_u32 v9, s47, v9")
        A(f"v_lshl_add_u32 v9, v{V_Q4}, 1, v9")
        A(f"v_cvt_pk_bf16_f32 v116, v{DA}, v{DA + 1}")
        A(f"v_cvt_pk_bf16_f32 v117, v{DA + 2}, v{DA + 3}")
        A("buffer_store_dwordx2 v[116:117], v9, s[16:19], 0 offen")
        for jx in range(3):
            d = DA + 4 + 4 * jx
            for r in range(4):
                A(f"v_mul_f32 v{d + r}, v{d + r}, v{112 + r}")
            A(f"v_cvt_pk_bf16_f32 v{118 + 2 * jx}, v{d}, v{d + 1}")
            A(f"v_cvt_pk_bf16_f32 v{119 + 2 * jx}, v{d + 2}, v{d + 3}")
            A(f"buffer_store_dwordx2 v[{118 + 2 * jx}:{119 + 2 * jx}], v9, s[16:19], 0 offen offset:{128 + 128 * jx}")
        A("s_mov_b64 exec, s[30:31]")
    L("M_END")
    A("s_endpgm")
    kd("tp_main_kernel", 256)


def main():
    hdr = open('standalone__tensor_product_equiv_equiformer__graph.s.ref').read().split('\n')
    for line in hdr:
        if line.startswith('; @launch'):
            break
        out.append(line)
    out.append(f"; @launch kernel=tp_hist_kernel grid=({G + 4},1,1) block=(1024,1,1) lds=8192")
    out.append(f"; @launch kernel=tp_scatter_kernel grid=({G},1,1) block=(1024,1,1) lds=8192")
    out.append(f"; @launch kernel=tp_main_kernel grid=({NBINS},1,1) block=(256,1,1) lds={L_TOT}")
    out.append('.amdgcn_target "amdgcn-amd-amdhsa--gfx950"')
    out.append(".text")
    gen_k1()
    gen_k2()
    gen_main()
    open(sys.argv[1], 'w').write("\n".join(out) + "\n")


main()
```

```python
import sys, os
NOMATH = os.environ.get("NOMATH") == "1"
FIXROW = os.environ.get("FIXROW") == "1"
STAMP = os.environ.get("STAMP") == "1"
def seg(k):
    if STAMP:
        A("s_memtime s[80:81]")
        A("s_waitcnt lgkmcnt(0)")
        A("s_sub_u32 s82, s80, s84")
        A(f"s_add_u32 s{86+k}, s{86+k}, s82")
        A("s_mov_b32 s84, s80")
def stamp(k):
    if STAMP:
        A(f"s_memtime s[{60+2*k}:{61+2*k}]")
        A("s_waitcnt lgkmcnt(0)")

N = 10000
E = 640000
NB = 20
NBINS = 500
G = 64
CHUNK = 10000
CAP = 1536

WS_H = 0
WS_BASE = 0x20000
WS_FRAD = 0x21000
WS_FW0 = 0x24000
WS_FW1 = 0x28000
WS_REC = 0x100000
WS_USED = WS_REC + E * 16

L_CNT = 0
L_P = 256
PSTR = 2832
L_REC = L_P + NB * PSTR
L_TOT = L_REC + CAP * 16

out = []


def A(s):
    out.append("    " + s)


def L(s):
    out.append(s + ":")


def C(s):
    out.append("    ; " + s)


def srd(base, ptr, nbytes):
    A(f"s_mov_b32 s{base}, s{ptr}")
    A(f"s_mov_b32 s{base+1}, s{ptr+1}")
    A(f"s_mov_b32 s{base+2}, {nbytes}")
    A(f"s_mov_b32 s{base+3}, 0x00020000")


def kd(name, vgpr, sgpr=102):
    out.append('.section .rodata,"a"')
    out.append(".p2align 6")
    out.append(f".amdhsa_kernel {name}")
    out.append(f"  .amdhsa_next_free_vgpr {vgpr}")
    out.append(f"  .amdhsa_next_free_sgpr {sgpr}")
    out.append(f"  .amdhsa_accum_offset {((vgpr + 3) // 4) * 4}")
    out.append("  .amdhsa_group_segment_fixed_size 0")
    out.append("  .amdhsa_kernarg_size 96")
    out.append("  .amdhsa_user_sgpr_count 2")
    out.append("  .amdhsa_user_sgpr_kernarg_segment_ptr 1")
    out.append("  .amdhsa_system_sgpr_workgroup_id_x 1")
    out.append(".end_amdhsa_kernel")
    out.append(".text")


def kstart(name):
    out.append(f".globl {name}")
    out.append(".p2align 8")
    out.append(f".type {name},@function")
    L(name)


def gen_k1():
    kstart("tp_hist_kernel")
    A(f"s_cmp_ge_u32 s2, {G + 4}")
    A("s_cbranch_scc1 K1_END")
    A(f"s_cmp_ge_u32 s2, {G}")
    A("s_cbranch_scc1 K1_PREP")
    A("s_load_dwordx2 s[20:21], s[0:1], 32")
    A("s_load_dwordx2 s[22:23], s[0:1], 88")
    A("s_waitcnt lgkmcnt(0)")
    srd(4, 20, E * 4)
    srd(8, 22, G * 2048)
    A("v_lshlrev_b32 v1, 2, v0")
    A("v_mov_b32 v2, 0")
    A("v_cmp_gt_u32 vcc, 512, v0")
    A("s_and_saveexec_b64 s[12:13], vcc")
    A("ds_write_b32 v1, v2")
    A("s_mov_b64 exec, s[12:13]")
    A("s_waitcnt lgkmcnt(0)")
    A("s_barrier")
    A(f"s_mul_i32 s14, s2, {CHUNK * 4}")
    A("v_add_u32 v3, s14, v1")
    for k in range(10):
        A(f"v_add_u32 v4, {4096 * k}, v3")
        A(f"buffer_load_dword v{10 + k}, v4, s[4:7], 0 offen")
    A("v_mov_b32 v5, 1")
    for k in range(10):
        A(f"s_waitcnt vmcnt({9 - k})")
        if k == 9:
            A(f"v_cmp_gt_u32 vcc, {CHUNK - 9216}, v0")
            A("s_and_saveexec_b64 s[12:13], vcc")
        A(f"v_mul_u32_u24 v6, 52429, v{10 + k}")
        A("v_lshrrev_b32 v6, 20, v6")
        A(f"v_min_u32 v6, {NBINS - 1}, v6")
        A("v_lshlrev_b32 v6, 2, v6")
        A("ds_add_u32 v6, v5")
    A("s_mov_b64 exec, s[12:13]")
    A("s_waitcnt lgkmcnt(0)")
    A("s_barrier")
    A(f"v_cmp_gt_u32 vcc, {NBINS}, v0")
    A("s_and_saveexec_b64 s[12:13], vcc")
    A("ds_read_b32 v2, v1")
    A("s_lshl_b32 s14, s2, 11")
    A("s_waitcnt lgkmcnt(0)")
    A("buffer_store_dword v2, v1, s[8:11], s14 offen")
    A("s_branch K1_END")

    L("K1_PREP")
    A("s_load_dwordx2 s[20:21], s[0:1], 40")
    A("s_load_dwordx2 s[22:23], s[0:1], 48")
    A("s_load_dwordx2 s[24:25], s[0:1], 56")
    A("s_load_dwordx2 s[26:27], s[0:1], 88")
    A("s_waitcnt lgkmcnt(0)")
    srd(4, 20, 16 * 320 * 2)
    srd(8, 22, 128 * 64 * 2)
    srd(12, 24, 192 * 64 * 2)
    srd(16, 26, WS_REC)
    A(f"s_sub_u32 s3, s2, {G}")
    A("s_lshl_b32 s3, s3, 10")
    A("v_add_u32 v1, s3, v0")
    A("v_and_b32 v2, 63, v1")
    A("v_and_b32 v3, 15, v2")
    A("v_lshrrev_b32 v4, 4, v2")
    A("v_cmp_gt_u32 vcc, 1280, v1")
    A("s_and_saveexec_b64 s[28:29], vcc")
    A("v_lshrrev_b32 v5, 6, v1")
    A("v_lshrrev_b32 v6, 2, v5")
    A("v_and_b32 v7, 3, v5")
    A("v_lshlrev_b32 v8, 6, v6")
    A("v_lshl_add_u32 v8, v3, 2, v8")
    A("v_add_u32 v8, v8, v7")
    A("v_lshlrev_b32 v9, 2, v4")
    A("v_mul_u32_u24 v9, 640, v9")
    A("v_lshl_add_u32 v9, v8, 1, v9")
    for kk in range(4):
        A(f"buffer_load_ushort v{10 + kk}, v9, s[4:7], 0 offen offset:{640 * kk}")
    A("s_waitcnt vmcnt(0)")
    A("v_lshl_or_b32 v10, v11, 16, v10")
    A("v_lshl_or_b32 v11, v13, 16, v12")
    A("v_lshlrev_b32 v14, 3, v1")
    A(f"v_add_u32 v14, {WS_FRAD}, v14")
    A("buffer_store_dwordx2 v[10:11], v14, s[16:19], 0 offen")
    A("s_mov_b64 exec, s[28:29]")
    A("v_subrev_u32 v5, 1280, v1")
    A("v_cmp_gt_u32 vcc, 1024, v5")
    A("s_and_saveexec_b64 s[28:29], vcc")
    A("v_lshrrev_b32 v6, 8, v5")
    A("v_bfe_u32 v7, v5, 6, 2")
    A("v_lshlrev_b32 v8, 5, v7")
    A("v_lshl_add_u32 v8, v4, 3, v8")
    A("v_lshlrev_b32 v8, 7, v8")
    A("v_lshl_add_u32 v9, v6, 4, v3")
    A("v_lshl_add_u32 v8, v9, 1, v8")
    for kk in range(8):
        A(f"buffer_load_ushort v{10 + kk}, v8, s[8:11], 0 offen offset:{128 * kk}")
    A("s_waitcnt vmcnt(0)")
    for p in range(4):
        A(f"v_lshl_or_b32 v{20 + p}, v{11 + 2 * p}, 16, v{10 + 2 * p}")
    A("v_lshlrev_b32 v14, 4, v5")
    A(f"v_add_u32 v14, {WS_FW0}, v14")
    A("buffer_store_dwordx4 v[20:23], v14, s[16:19], 0 offen")
    A("s_mov_b64 exec, s[28:29]")
    A("v_subrev_u32 v5, 2304, v1")
    A("v_cmp_gt_u32 vcc, 1536, v5")
    A("s_and_saveexec_b64 s[28:29], vcc")
    A("v_lshrrev_b32 v7, 8, v5")
    A("v_bfe_u32 v6, v5, 6, 2")
    A("v_lshlrev_b32 v8, 5, v7")
    A("v_lshl_add_u32 v8, v4, 3, v8")
    A("v_lshlrev_b32 v8, 7, v8")
    A("v_lshl_add_u32 v9, v6, 4, v3")
    A("v_lshl_add_u32 v8, v9, 1, v8")
    for kk in range(8):
        A(f"buffer_load_ushort v{10 + kk}, v8, s[12:15], 0 offen offset:{128 * kk}")
    A("s_waitcnt vmcnt(0)")
    for p in range(4):
        A(f"v_lshl_or_b32 v{20 + p}, v{11 + 2 * p}, 16, v{10 + 2 * p}")
    A("v_lshlrev_b32 v14, 4, v5")
    A(f"v_add_u32 v14, {WS_FW1}, v14")
    A("buffer_store_dwordx4 v[20:23], v14, s[16:19], 0 offen")
    A("s_mov_b64 exec, s[28:29]")
    L("K1_END")
    A("s_endpgm")
    kd("tp_hist_kernel", 32)


def gen_k2():
    kstart("tp_scatter_kernel")
    A(f"s_cmp_ge_u32 s2, {G}")
    A("s_cbranch_scc1 K2_END")
    A("s_load_dwordx2 s[20:21], s[0:1], 32")
    A("s_load_dwordx2 s[22:23], s[0:1], 24")
    A("s_load_dwordx2 s[24:25], s[0:1], 8")
    A("s_load_dwordx2 s[26:27], s[0:1], 88")
    A("s_waitcnt lgkmcnt(0)")
    srd(4, 20, E * 4)
    srd(8, 22, E * 4)
    srd(12, 24, E * 6)
    srd(16, 26, WS_USED)
    A("v_lshlrev_b32 v1, 2, v0")
    A("v_mov_b32 v2, 0")
    A("v_mov_b32 v3, 0")
    A("v_cmp_gt_u32 vcc, 512, v0")
    A("s_and_saveexec_b64 s[28:29], vcc")
    A("s_cbranch_execz K2_SKIPA")
    for bt in range(G // 16):
        for q in range(16):
            A(f"s_mov_b32 s30, {(bt * 16 + q) * 2048}")
            A(f"buffer_load_dword v{10 + q}, v1, s[16:19], s30 offen")
        A("s_waitcnt vmcnt(0)")
        for q in range(16):
            gp = bt * 16 + q
            A(f"s_cmp_lg_u32 s2, {gp}")
            A(f"s_cbranch_scc1 K2_NS{gp}")
            A("v_mov_b32 v3, v2")
            L(f"K2_NS{gp}")
            A(f"v_add_u32 v2, v2, v{10 + q}")
    A(f"v_cmp_gt_u32 vcc, {NBINS}, v0")
    A("s_nop 1")
    A("v_cndmask_b32 v2, 0, v2, vcc")
    A("v_cndmask_b32 v3, 0, v3, vcc")
    A("v_mov_b32 v4, v2")
    A("s_nop 1")
    for sh in (1, 2, 4, 8):
        A(f"v_add_u32_dpp v4, v4, v4 row_shr:{sh} row_mask:0xf bank_mask:0xf bound_ctrl:0")
        A("s_nop 1")
    A("v_add_u32_dpp v4, v4, v4 row_bcast:15 row_mask:0xa bank_mask:0xf")
    A("s_nop 1")
    A("v_add_u32_dpp v4, v4, v4 row_bcast:31 row_mask:0xc bank_mask:0xf")
    A("s_nop 1")
    A("v_readlane_b32 s31, v4, 63")
    A("v_lshrrev_b32 v5, 6, v0")
    A("v_lshlrev_b32 v5, 2, v5")
    A("v_mov_b32 v6, s31")
    A("ds_write_b32 v5, v6 offset:4096")
    L("K2_SKIPA")
    A("s_mov_b64 exec, s[28:29]")
    A("s_waitcnt lgkmcnt(0)")
    A("s_barrier")
    A("v_cmp_gt_u32 vcc, 512, v0")
    A("s_and_saveexec_b64 s[28:29], vcc")
    A("s_cbranch_execz K2_SKIPB")
    A("v_mov_b32 v5, 0")
    A("ds_read_b128 v[8:11], v5 offset:4096")
    A("ds_read_b128 v[12:15], v5 offset:4112")
    A("v_lshrrev_b32 v6, 6, v0")
    A("s_nop 0")
    A("v_readfirstlane_b32 s32, v6")
    A("s_waitcnt lgkmcnt(0)")
    A("s_mov_b32 s33, 0")
    for m in range(8):
        A(f"v_readfirstlane_b32 s34, v{8 + m}")
        A("s_nop 3")
        A(f"s_cmp_gt_u32 s32, {m}")
        A("s_cselect_b32 s34, s34, 0")
        A("s_add_u32 s33, s33, s34")
    A("v_sub_u32 v4, v4, v2")
    A("v_add_u32 v4, s33, v4")
    A("v_add_u32 v7, v4, v3")
    A("ds_write_b32 v1, v7")
    A("s_cmp_lg_u32 s2, 0")
    A("s_cbranch_scc1 K2_SKIPB")
    A(f"v_cmp_gt_u32 vcc, {NBINS}, v0")
    A("s_and_saveexec_b64 s[34:35], vcc")
    A(f"v_add_u32 v5, {WS_BASE}, v1")
    A("buffer_store_dword v4, v5, s[16:19], 0 offen")
    A(f"v_cmp_eq_u32 vcc, {NBINS - 1}, v0")
    A("s_and_saveexec_b64 s[36:37], vcc")
    A("v_add_u32 v4, v4, v2")
    A("buffer_store_dword v4, v5, s[16:19], 0 offen offset:4")
    L("K2_SKIPB")
    A("s_mov_b64 exec, s[28:29]")
    A("s_waitcnt vmcnt(0) lgkmcnt(0)")
    A("s_barrier")
    A(f"s_mul_i32 s30, s2, {CHUNK}")
    A("v_mov_b32 v5, 1")
    for k in range(10):
        if k == 9:
            A(f"v_cmp_gt_u32 vcc, {CHUNK - 9216}, v0")
            A("s_and_saveexec_b64 s[28:29], vcc")
        A(f"v_add_u32 v6, {1024 * k}, v0")
        A("v_add_u32 v6, s30, v6")
        A("v_lshlrev_b32 v7, 2, v6")
        A("buffer_load_dword v8, v7, s[4:7], 0 offen")
        A("buffer_load_dword v9, v7, s[8:11], 0 offen")
        A("v_mul_u32_u24 v10, 6, v6")
        A("v_and_b32 v11, 0xfffffffc, v10")
        A("buffer_load_dwordx2 v[12:13], v11, s[12:15], 0 offen")
        A("v_and_b32 v10, 3, v10")
        A("v_lshlrev_b32 v10, 3, v10")
        A("s_waitcnt vmcnt(0)")
        A("v_mul_u32_u24 v14, 52429, v8")
        A("v_lshrrev_b32 v14, 20, v14")
        A(f"v_min_u32 v14, {NBINS - 1}, v14")
        A(f"v_mul_u32_u24 v15, {NB}, v14")
        A("v_sub_u32 v15, v8, v15")
        A("v_and_b32 v15, 31, v15")
        A("v_lshlrev_b32 v14, 2, v14")
        A("ds_add_rtn_u32 v16, v14, v5")
        A("v_lshl_or_b32 v20, v6, 5, v15")
        A("v_mov_b32 v21, v9")
        A("v_lshrrev_b64 v[12:13], v10, v[12:13]")
        A("v_mov_b32 v22, v12")
        A("v_and_b32 v23, 0xffff, v13")
        A("s_waitcnt lgkmcnt(0)")
        A("v_lshlrev_b32 v16, 4, v16")
        A(f"v_add_u32 v16, {WS_REC}, v16")
        A("buffer_store_dwordx4 v[20:23], v16, s[16:19], 0 offen")
        A("s_nop 1")
    L("K2_END")
    A("s_endpgm")
    kd("tp_scatter_kernel", 32)


B0 = 16
ACC = 56
D0 = 100
X0 = [140, 172]
AR = [204, 206]
YP = [208, 216]
YU = 224
T0 = 236
V_I16 = 1
V_Q4 = 2
V_KG8 = 3
V_I8 = 4
V_PB = 5
MASK = [40, 42]


def acc(j, t):
    return ACC + t * 4 + j


def load_tile(st):
    t = T0
    A(f"v_add_u32 v{t}, s50, v{V_I16}")
    A(f"v_cmp_gt_u32 s[{MASK[st]}:{MASK[st] + 1}], s51, v{t}")
    A("s_sub_u32 s52, s51, 1")
    A(f"v_min_u32 v{t}, s52, v{t}")
    A(f"v_lshlrev_b32 v{t}, 4, v{t}")
    A(f"ds_read_b32 v{t + 1}, v{t} offset:{L_REC}")
    A(f"v_add_u32 v{t + 2}, s50, v{V_Q4}")
    for r in range(4):
        A(f"v_add_u32 v{t + 3}, {r}, v{t + 2}")
        A(f"v_min_u32 v{t + 3}, s52, v{t + 3}")
        A(f"v_lshlrev_b32 v{t + 3}, 4, v{t + 3}")
        A(f"ds_read_b64 v[{t + 4 + 2 * r}:{t + 5 + 2 * r}], v{t + 3} offset:{L_REC}")
        A(f"ds_read_b64 v[{YP[st] + 2 * r}:{YP[st] + 2 * r + 1}], v{t + 3} offset:{L_REC + 8}")
    A("s_waitcnt lgkmcnt(0)")
    A(f"v_lshrrev_b32 v{t + 1}, 5, v{t + 1}")
    A(f"v_lshlrev_b32 v{t + 1}, 5, v{t + 1}")
    A(f"v_add_u32 v{t + 1}, v{t + 1}, v{V_KG8}")
    if FIXROW:
        A(f"v_mov_b32 v{t + 1}, 0")
    A(f"buffer_load_dwordx2 v[{AR[st]}:{AR[st] + 1}], v{t + 1}, s[8:11], 0 offen")
    for r in range(4):
        A(f"v_lshlrev_b32 v{t + 12}, 9, v{t + 5 + 2 * r}")
        if FIXROW:
            A(f"v_mov_b32 v{t + 12}, 0")
        A(f"v_add_u32 v{t + 12 + r}, v{t + 12}, v{V_I8}")
        for s in range(4):
            xr = X0[st] + r * 8 + s * 2
            A(f"buffer_load_dwordx2 v[{xr}:{xr + 1}], v{t + 12 + r}, s[4:7], 0 offen offset:{128 * s}")


def comp_tile(st):
    a = AR[st]
    A(f"v_cndmask_b32 v{a}, 0, v{a}, s[{MASK[st]}:{MASK[st] + 1}]")
    A(f"v_cndmask_b32 v{a + 1}, 0, v{a + 1}, s[{MASK[st]}:{MASK[st] + 1}]")
    for r in range(4):
        A(f"v_lshlrev_b32 v{YU + 3 * r}, 16, v{YP[st] + 2 * r}")
        A(f"v_and_b32 v{YU + 3 * r + 1}, 0xffff0000, v{YP[st] + 2 * r}")
        A(f"v_lshlrev_b32 v{YU + 3 * r + 2}, 16, v{YP[st] + 2 * r + 1}")
    for half in range(2):
        for k5 in range(5):
            for jj in range(2):
                d = D0 + (k5 * 2 + jj) * 4
                b = B0 + (k5 * 4 + 2 * half + jj) * 2
                if os.environ.get("NOMFMA") != "1":
                    A(f"v_mfma_f32_16x16x16_bf16 v[{d}:{d + 3}], v[{a}:{a + 1}], v[{b}:{b + 1}], 0")
        A("s_nop 7")
        for r in range(4):
            Yx, Yy, Yz = YU + 3 * r, YU + 3 * r + 1, YU + 3 * r + 2
            for jj in range(2 if not NOMATH else 0):
                j = 2 * half + jj
                f0, fx, fy, fz, tt, uu = T0 + 14, T0 + 15, T0 + 16, T0 + 17, T0 + 18, T0 + 19
                for s, dst in enumerate((f0, fx, fy, fz)):
                    xr = X0[st] + r * 8 + s * 2 + half
                    if jj == 0:
                        A(f"v_lshlrev_b32 v{dst}, 16, v{xr}")
                    else:
                        A(f"v_and_b32 v{dst}, 0xffff0000, v{xr}")

                def R(k5):
                    return D0 + (k5 * 2 + jj) * 4 + r
                A(f"v_fmac_f32 v{acc(j, 0)}, v{f0}, v{R(0)}")
                A(f"v_mul_f32 v{tt}, v{fx}, v{Yx}")
                A(f"v_fmac_f32 v{tt}, v{fy}, v{Yy}")
                A(f"v_fmac_f32 v{tt}, v{fz}, v{Yz}")
                A(f"v_fmac_f32 v{acc(j, 1)}, v{tt}, v{R(1)}")
                A(f"v_mul_f32 v{uu}, v{f0}, v{R(2)}")
                A(f"v_fmac_f32 v{acc(j, 2)}, v{uu}, v{Yx}")
                A(f"v_fmac_f32 v{acc(j, 3)}, v{uu}, v{Yy}")
                A(f"v_fmac_f32 v{acc(j, 4)}, v{uu}, v{Yz}")
                A(f"v_fmac_f32 v{acc(j, 5)}, v{fx}, v{R(3)}")
                A(f"v_fmac_f32 v{acc(j, 6)}, v{fy}, v{R(3)}")
                A(f"v_fmac_f32 v{acc(j, 7)}, v{fz}, v{R(3)}")
                A(f"v_mul_f32 v{tt}, v{fz}, v{Yy}")
                A(f"v_fma_f32 v{tt}, -v{fy}, v{Yz}, v{tt}")
                A(f"v_fmac_f32 v{acc(j, 8)}, v{tt}, v{R(4)}")
                A(f"v_mul_f32 v{tt}, v{fx}, v{Yz}")
                A(f"v_fma_f32 v{tt}, -v{fz}, v{Yx}, v{tt}")
                A(f"v_fmac_f32 v{acc(j, 9)}, v{tt}, v{R(4)}")
                A(f"v_mul_f32 v{tt}, v{fy}, v{Yx}")
                A(f"v_fma_f32 v{tt}, -v{fx}, v{Yy}, v{tt}")
                A(f"v_fmac_f32 v{acc(j, 10)}, v{tt}, v{R(4)}")


TERM_OFF = [0, 256, 512, 512 + 768, 512 + 1536, 512 + 256, 512 + 768 + 256, 512 + 1536 + 256,
            512 + 512, 512 + 768 + 512, 512 + 1536 + 512]


def flush(tag):
    for q in range(44):
        r = ACC + q
        A(f"v_mov_b32 v{T0 + 1}, v{r}")
        A("s_nop 1")
        A(f"v_permlane32_swap_b32 v{r}, v{T0 + 1}")
        A("s_nop 1")
        A(f"v_add_f32 v{r}, v{r}, v{T0 + 1}")
        A(f"v_mov_b32 v{T0 + 1}, v{r}")
        A("s_nop 1")
        A(f"v_permlane16_swap_b32 v{r}, v{T0 + 1}")
        A("s_nop 1")
        A(f"v_add_f32 v{r}, v{r}, v{T0 + 1}")
    A(f"s_mul_i32 s54, s53, {PSTR}")
    A(f"v_add_u32 v{T0}, s54, v{V_PB}")
    A("s_mov_b64 exec, 0xffff")
    for t in range(11):
        A(f"ds_read_b128 v[{D0 + 4 * (t % 10)}:{D0 + 4 * (t % 10) + 3}], v{T0} offset:{L_P + TERM_OFF[t]}") if t < 10 else None
    A("s_waitcnt lgkmcnt(0)")
    for t in range(10):
        for j in range(4):
            A(f"v_add_f32 v{acc(j, t)}, v{acc(j, t)}, v{D0 + 4 * t + j}")
    A(f"ds_read_b128 v[{D0}:{D0 + 3}], v{T0} offset:{L_P + TERM_OFF[10]}")
    A("s_waitcnt lgkmcnt(0)")
    for j in range(4):
        A(f"v_add_f32 v{acc(j, 10)}, v{acc(j, 10)}, v{D0 + j}")
    for t in range(11):
        A(f"ds_write_b128 v{T0}, v[{acc(0, t)}:{acc(0, t) + 3}] offset:{L_P + TERM_OFF[t]}")
    A("s_mov_b64 exec, -1")
    A("s_waitcnt lgkmcnt(0)")
    for q in range(44):
        A(f"v_mov_b32 v{ACC + q}, 0")


def gen_main():
    kstart("tp_main_kernel")
    A(f"s_cmp_ge_u32 s2, {NBINS}")
    A("s_cbranch_scc1 M_END")
    A("s_load_dwordx2 s[20:21], s[0:1], 0")
    A("s_load_dwordx2 s[22:23], s[0:1], 16")
    A("s_load_dwordx2 s[24:25], s[0:1], 88")
    A("s_load_dwordx2 s[26:27], s[0:1], 72")
    A("s_waitcnt lgkmcnt(0)")
    srd(4, 20, N * 512)
    srd(8, 22, E * 32)
    srd(12, 24, WS_USED)
    srd(16, 26, N * 512)
    stamp(0)
    A("s_lshl_b32 s3, s2, 2")
    A(f"s_add_u32 s3, s3, {WS_BASE}")
    A("s_load_dwordx2 s[28:29], s[24:25], s3")
    A("v_and_b32 v6, 63, v0")
    A(f"v_and_b32 v{V_I16}, 15, v6")
    A("v_lshrrev_b32 v7, 4, v6")
    A(f"v_lshlrev_b32 v{V_Q4}, 2, v7")
    A(f"v_lshlrev_b32 v{V_KG8}, 3, v7")
    A(f"v_lshlrev_b32 v{V_I8}, 3, v{V_I16}")
    A(f"v_lshlrev_b32 v{V_PB}, 4, v{V_I16}")
    A("v_lshlrev_b32 v7, 3, v6")
    for t in range(20):
        A(f"v_add_u32 v8, {WS_FRAD + t * 512}, v7")
        A(f"buffer_load_dwordx2 v[{B0 + 2 * t}:{B0 + 2 * t + 1}], v8, s[12:15], 0 offen")
    A("v_lshlrev_b32 v7, 4, v0")
    for q in range(4):
        A(f"v_mov_b32 v{D0 + q}, 0")
    nz = (NB * PSTR) // 16
    for k in range(0, (nz + 255) // 256):
        if (k + 1) * 256 > nz:
            A(f"v_cmp_gt_u32 vcc, {nz - k * 256}, v0")
            A("s_and_saveexec_b64 s[30:31], vcc")
        A(f"ds_write_b128 v7, v[{D0}:{D0 + 3}] offset:{L_P + k * 4096}")
    A("s_mov_b64 exec, s[30:31]")
    for j in range(4):
        for t in range(11):
            A(f"v_mov_b32 v{acc(j, t)}, 0")
    A("v_lshrrev_b32 v7, 6, v0")
    A("s_nop 0")
    A("v_readfirstlane_b32 s44, v7")
    A("s_waitcnt lgkmcnt(0)")
    stamp(1)
    L("M_PASS")
    A("s_sub_u32 s45, s29, s28")
    A(f"s_min_u32 s45, s45, {CAP}")
    A("v_cmp_gt_u32 vcc, 32, v0")
    A("s_and_saveexec_b64 s[30:31], vcc")
    A("v_lshlrev_b32 v7, 2, v0")
    A("v_mov_b32 v8, 0")
    A(f"ds_write_b32 v7, v8 offset:{L_CNT}")
    A("s_mov_b64 exec, s[30:31]")
    A("s_waitcnt lgkmcnt(0)")
    A("s_barrier")
    for k in range(6):
        A(f"v_add_u32 v7, {256 * k}, v0")
        A("v_add_u32 v8, s28, v7")
        A("v_lshlrev_b32 v8, 4, v8")
        A(f"v_add_u32 v8, {WS_REC}, v8")
        A(f"buffer_load_dwordx4 v[{D0 + 4 * k}:{D0 + 4 * k + 3}], v8, s[12:15], 0 offen")
    A("v_mov_b32 v9, 1")
    for k in range(6):
        A(f"s_waitcnt vmcnt({5 - k})")
        A(f"v_add_u32 v7, {256 * k}, v0")
        A("v_cmp_gt_u32 vcc, s45, v7")
        A("s_and_saveexec_b64 s[30:31], vcc")
        A(f"v_and_b32 v8, 31, v{D0 + 4 * k}")
        A("v_lshlrev_b32 v8, 2, v8")
        A(f"ds_add_rtn_u32 v{D0 + 24 + k}, v8, v9 offset:{L_CNT}")
        A("s_mov_b64 exec, s[30:31]")
    A("s_waitcnt lgkmcnt(0)")
    A("s_barrier")
    A("v_and_b32 v7, 31, v0")
    A("v_lshlrev_b32 v7, 2, v7")
    A(f"ds_read_b32 v8, v7 offset:{L_CNT}")
    A("s_waitcnt lgkmcnt(0)")
    A("s_mov_b32 s46, 0")
    A("v_mov_b32 v9, 0")
    for m in range(NB + 1):
        A(f"v_writelane_b32 v9, s46, {m}")
        if m < NB:
            A(f"v_readlane_b32 s47, v8, {m}")
            A("s_nop 3")
            A("s_add_u32 s46, s46, s47")
    for k in range(6):
        A(f"v_and_b32 v10, 31, v{D0 + 4 * k}")
        A("v_lshlrev_b32 v10, 2, v10")
        A("ds_bpermute_b32 v11, v10, v9")
        A(f"v_add_u32 v7, {256 * k}, v0")
        A("v_cmp_gt_u32 vcc, s45, v7")
        A("s_and_saveexec_b64 s[30:31], vcc")
        A("s_waitcnt lgkmcnt(0)")
        A(f"v_add_u32 v11, v11, v{D0 + 24 + k}")
        A("v_lshlrev_b32 v11, 4, v11")
        A(f"ds_write_b128 v11, v[{D0 + 4 * k}:{D0 + 4 * k + 3}] offset:{L_REC}")
        A("s_mov_b64 exec, s[30:31]")
    A("s_waitcnt lgkmcnt(0)")
    A("s_barrier")
    stamp(2)
    if STAMP:
        for k in range(6):
            A(f"s_mov_b32 s{86+k}, 0")
        A("s_mov_b32 s84, s64")
    A("s_mul_i32 s48, s44, 5")
    A("s_add_u32 s49, s48, 5")
    L("M_FIND0")
    A("s_cmp_ge_u32 s48, s49")
    A("s_cbranch_scc1 M_WAVEDONE")
    A("v_readlane_b32 s50, v9, s48")
    A("s_add_u32 s47, s48, 1")
    A("v_readlane_b32 s51, v9, s47")
    A("s_nop 3")
    A("s_cmp_lt_u32 s50, s51")
    A("s_cbranch_scc1 M_FOUND0")
    A("s_add_u32 s48, s48, 1")
    A("s_branch M_FIND0")
    L("M_FOUND0")
    load_tile(0)
    A("s_mov_b32 s57, s50")
    A("s_mov_b32 s58, s51")
    A("s_mov_b32 s59, s48")
    for st in range(2):
        nx = 1 - st
        L(f"M_LOOP{st}")
        A("s_add_u32 s50, s57, 16")
        A("s_mov_b32 s51, s58")
        A("s_cmp_lt_u32 s50, s58")
        A(f"s_cbranch_scc1 M_HASNEXT{st}")
        L(f"M_FIND{st}_N")
        A("s_add_u32 s48, s48, 1")
        A("s_cmp_ge_u32 s48, s49")
        A(f"s_cbranch_scc1 M_NONEXT{st}")
        A("v_readlane_b32 s50, v9, s48")
        A("s_add_u32 s47, s48, 1")
        A("v_readlane_b32 s51, v9, s47")
        A("s_nop 3")
        A("s_cmp_lt_u32 s50, s51")
        A(f"s_cbranch_scc0 M_FIND{st}_N")
        L(f"M_HASNEXT{st}")
        seg(0)
        load_tile(nx)
        seg(1)
        A("s_waitcnt vmcnt(17)")
        seg(2)
        A("s_mov_b32 s56, 1")
        A(f"s_branch M_COMP{st}")
        L(f"M_NONEXT{st}")
        A("s_waitcnt vmcnt(0)")
        A("s_mov_b32 s56, 0")
        L(f"M_COMP{st}")
        comp_tile(st)
        seg(3)
        A("s_add_u32 s47, s57, 16")
        A("s_cmp_lt_u32 s47, s58")
        A(f"s_cbranch_scc1 M_NOFLUSH{st}")
        A("s_mov_b32 s53, s59")
        flush(f"f{st}")
        L(f"M_NOFLUSH{st}")
        seg(4)
        A("s_cmp_eq_u32 s56, 0")
        A("s_cbranch_scc1 M_WAVEDONE")
        A("s_mov_b32 s57, s50")
        A("s_mov_b32 s58, s51")
        A("s_mov_b32 s59, s48")
        if st == 1:
            A("s_branch M_LOOP0")
    L("M_WAVEDONE")
    A("s_waitcnt vmcnt(0) lgkmcnt(0)")
    A("s_barrier")
    A("s_add_u32 s28, s28, s45")
    A("s_cmp_lt_u32 s28, s29")
    A("s_cbranch_scc1 M_PASS")
    stamp(3)
    A("v_and_b32 v6, 63, v0")
    A("v_lshlrev_b32 v7, 4, v6")
    for s in range(4):
        A(f"s_lshl_b32 s47, s44, 2")
        A(f"s_add_u32 s47, s47, {s}")
        A("s_lshl_b32 s47, s47, 10")
        A(f"s_add_u32 s47, s47, {WS_FW0}")
        A(f"buffer_load_dwordx4 v[{16 + 4 * s}:{19 + 4 * s}], v7, s[12:15], s47 offen")
    for s in range(6):
        A(f"s_lshl_b32 s47, s44, 10")
        A(f"s_add_u32 s47, s47, {WS_FW1 + s * 4096}")
        A(f"buffer_load_dwordx4 v[{32 + 4 * s}:{35 + 4 * s}], v7, s[12:15], s47 offen")
    A("s_waitcnt vmcnt(0)")
    A(f"s_mul_i32 s46, s2, {NB}")
    for tile in range(2):
        A(f"v_add_u32 v7, {16 * tile}, v{V_I16}")
        A(f"v_min_u32 v8, {NB - 1}, v7")
        A(f"v_mul_u32_u24 v8, {PSTR}, v8")
        A(f"v_lshl_add_u32 v8, v{V_Q4}, 3, v8")
        DA = 56
        for q in range(16):
            A(f"v_mov_b32 v{DA + q}, 0")
        for s in range(4):
            A(f"ds_read_b128 v[100:103], v8 offset:{L_P + 128 * s}")
            A(f"ds_read_b128 v[104:107], v8 offset:{L_P + 128 * s + 16}")
            A("s_waitcnt lgkmcnt(0)")
            for p in range(4):
                A(f"v_cvt_pk_bf16_f32 v{108 + p}, v{100 + 2 * p}, v{101 + 2 * p}")
            A("s_nop 1")
            A(f"v_mfma_f32_16x16x32_bf16 v[{DA}:{DA + 3}], v[{16 + 4 * s}:{19 + 4 * s}], v[108:111], v[{DA}:{DA + 3}]")
        for jx in range(3):
            for s in range(6):
                off = L_P + 512 + jx * 768 + 128 * s
                A(f"ds_read_b128 v[100:103], v8 offset:{off}")
                A(f"ds_read_b128 v[104:107], v8 offset:{off + 16}")
                A("s_waitcnt lgkmcnt(0)")
                for p in range(4):
                    A(f"v_cvt_pk_bf16_f32 v{108 + p}, v{100 + 2 * p}, v{101 + 2 * p}")
                A("s_nop 1")
                d = DA + 4 + 4 * jx
                A(f"v_mfma_f32_16x16x32_bf16 v[{d}:{d + 3}], v[{32 + 4 * s}:{35 + 4 * s}], v[108:111], v[{d}:{d + 3}]")
        A("s_nop 7")
        A("s_nop 3")
        A(f"v_cmp_gt_u32 vcc, {NB}, v7")
        A("s_and_saveexec_b64 s[30:31], vcc")
        A("s_mov_b32 s47, 0xbfb8aa3b")
        for r in range(4):
            A(f"v_mul_f32 v{112 + r}, s47, v{DA + r}")
            A(f"v_exp_f32 v{112 + r}, v{112 + r}")
            A("s_nop 0")
            A(f"v_add_f32 v{112 + r}, 1.0, v{112 + r}")
            A(f"v_rcp_f32 v{112 + r}, v{112 + r}")
            A("s_nop 0")
        A("v_add_u32 v9, s46, v7")
        A("v_lshlrev_b32 v9, 9, v9")
        A("s_lshl_b32 s47, s44, 5")
        A("v_add_u32 v9, s47, v9")
        A(f"v_lshl_add_u32 v9, v{V_Q4}, 1, v9")
        A(f"v_cvt_pk_bf16_f32 v116, v{DA}, v{DA + 1}")
        A(f"v_cvt_pk_bf16_f32 v117, v{DA + 2}, v{DA + 3}")
        A("buffer_store_dwordx2 v[116:117], v9, s[16:19], 0 offen")
        for jx in range(3):
            d = DA + 4 + 4 * jx
            for r in range(4):
                A(f"v_mul_f32 v{d + r}, v{d + r}, v{112 + r}")
            A(f"v_cvt_pk_bf16_f32 v{118 + 2 * jx}, v{d}, v{d + 1}")
            A(f"v_cvt_pk_bf16_f32 v{119 + 2 * jx}, v{d + 2}, v{d + 3}")
            A(f"buffer_store_dwordx2 v[{118 + 2 * jx}:{119 + 2 * jx}], v9, s[16:19], 0 offen offset:{128 + 128 * jx}")
        A("s_mov_b64 exec, s[30:31]")
    if STAMP:
        stamp(4)
        A("s_cmp_lg_u32 s2, 0")
        A("s_cbranch_scc1 M_END")
        A("s_load_dwordx2 s[20:21], s[0:1], 80")
        A("s_waitcnt lgkmcnt(0)")
        srd(4, 20, 256)
        A("v_mov_b32 v1, 0")
        for k in range(5):
            A(f"v_mov_b32 v2, s{60+2*k}")
            A(f"buffer_store_dword v2, v1, s[4:7], 0 offen offset:{4*k}")
        for k in range(5):
            A(f"v_mov_b32 v2, s{86+k}")
            A(f"buffer_store_dword v2, v1, s[4:7], 0 offen offset:{20+4*k}")
    L("M_END")
    A("s_endpgm")
    kd("tp_main_kernel", 256)


def main():
    hdr = open('standalone__tensor_product_equiv_equiformer__graph.s.ref').read().split('\n')
    for line in hdr:
        if line.startswith('; @launch'):
            break
        out.append(line)
    out.append(f"; @launch kernel=tp_hist_kernel grid=({G + 4},1,1) block=(1024,1,1) lds=8192")
    out.append(f"; @launch kernel=tp_scatter_kernel grid=({G},1,1) block=(1024,1,1) lds=8192")
    out.append(f"; @launch kernel=tp_main_kernel grid=({NBINS},1,1) block=(256,1,1) lds={L_TOT}")
    out.append('.amdgcn_target "amdgcn-amd-amdhsa--gfx950"')
    out.append(".text")
    gen_k1()
    gen_k2()
    gen_main()
    open(sys.argv[1], 'w').write("\n".join(out) + "\n")


main()
```

```python
import sys, os
NOMATH = os.environ.get("NOMATH") == "1"
FIXROW = os.environ.get("FIXROW") == "1"
STAMP = os.environ.get("STAMP") == "1"
def seg(k):
    if STAMP:
        A("s_memtime s[80:81]")
        A("s_waitcnt lgkmcnt(0)")
        A("s_sub_u32 s82, s80, s84")
        A(f"s_add_u32 s{86+k}, s{86+k}, s82")
        A("s_mov_b32 s84, s80")
def stamp(k):
    if STAMP:
        A(f"s_memtime s[{60+2*k}:{61+2*k}]")
        A("s_waitcnt lgkmcnt(0)")

N = 10000
E = 640000
NB = 20
NBINS = 500
G = 64
CHUNK = 10000
CAP = 1536

WS_H = 0
WS_BASE = 0x20000
WS_FRAD = 0x21000
WS_FW0 = 0x24000
WS_FW1 = 0x28000
WS_REC = 0x100000
WS_USED = WS_REC + E * 16

L_CNT = 0
L_P = 256
PSTR = 2832
L_REC = L_P + NB * PSTR
L_TOT = L_REC + CAP * 16

out = []


def A(s):
    out.append("    " + s)


def L(s):
    out.append(s + ":")


def C(s):
    out.append("    ; " + s)


def srd(base, ptr, nbytes):
    A(f"s_mov_b32 s{base}, s{ptr}")
    A(f"s_mov_b32 s{base+1}, s{ptr+1}")
    A(f"s_mov_b32 s{base+2}, {nbytes}")
    A(f"s_mov_b32 s{base+3}, 0x00020000")


def kd(name, vgpr, sgpr=102):
    out.append('.section .rodata,"a"')
    out.append(".p2align 6")
    out.append(f".amdhsa_kernel {name}")
    out.append(f"  .amdhsa_next_free_vgpr {vgpr}")
    out.append(f"  .amdhsa_next_free_sgpr {sgpr}")
    out.append(f"  .amdhsa_accum_offset {((vgpr + 3) // 4) * 4}")
    out.append("  .amdhsa_group_segment_fixed_size 0")
    out.append("  .amdhsa_kernarg_size 96")
    out.append("  .amdhsa_user_sgpr_count 2")
    out.append("  .amdhsa_user_sgpr_kernarg_segment_ptr 1")
    out.append("  .amdhsa_system_sgpr_workgroup_id_x 1")
    out.append(".end_amdhsa_kernel")
    out.append(".text")


def kstart(name):
    out.append(f".globl {name}")
    out.append(".p2align 8")
    out.append(f".type {name},@function")
    L(name)


def gen_k1():
    kstart("tp_hist_kernel")
    A(f"s_cmp_ge_u32 s2, {G + 4}")
    A("s_cbranch_scc1 K1_END")
    A(f"s_cmp_ge_u32 s2, {G}")
    A("s_cbranch_scc1 K1_PREP")
    A("s_load_dwordx2 s[20:21], s[0:1], 32")
    A("s_load_dwordx2 s[22:23], s[0:1], 88")
    A("s_waitcnt lgkmcnt(0)")
    srd(4, 20, E * 4)
    srd(8, 22, G * 2048)
    A("v_lshlrev_b32 v1, 2, v0")
    A("v_mov_b32 v2, 0")
    A("v_cmp_gt_u32 vcc, 512, v0")
    A("s_and_saveexec_b64 s[12:13], vcc")
    A("ds_write_b32 v1, v2")
    A("s_mov_b64 exec, s[12:13]")
    A("s_waitcnt lgkmcnt(0)")
    A("s_barrier")
    A(f"s_mul_i32 s14, s2, {CHUNK * 4}")
    A("v_add_u32 v3, s14, v1")
    for k in range(10):
        A(f"v_add_u32 v4, {4096 * k}, v3")
        A(f"buffer_load_dword v{10 + k}, v4, s[4:7], 0 offen")
    A("v_mov_b32 v5, 1")
    for k in range(10):
        A(f"s_waitcnt vmcnt({9 - k})")
        if k == 9:
            A(f"v_cmp_gt_u32 vcc, {CHUNK - 9216}, v0")
            A("s_and_saveexec_b64 s[12:13], vcc")
        A(f"v_mul_u32_u24 v6, 52429, v{10 + k}")
        A("v_lshrrev_b32 v6, 20, v6")
        A(f"v_min_u32 v6, {NBINS - 1}, v6")
        A("v_lshlrev_b32 v6, 2, v6")
        A("ds_add_u32 v6, v5")
    A("s_mov_b64 exec, s[12:13]")
    A("s_waitcnt lgkmcnt(0)")
    A("s_barrier")
    A(f"v_cmp_gt_u32 vcc, {NBINS}, v0")
    A("s_and_saveexec_b64 s[12:13], vcc")
    A("ds_read_b32 v2, v1")
    A("s_lshl_b32 s14, s2, 11")
    A("s_waitcnt lgkmcnt(0)")
    A("buffer_store_dword v2, v1, s[8:11], s14 offen")
    A("s_branch K1_END")

    L("K1_PREP")
    A("s_load_dwordx2 s[20:21], s[0:1], 40")
    A("s_load_dwordx2 s[22:23], s[0:1], 48")
    A("s_load_dwordx2 s[24:25], s[0:1], 56")
    A("s_load_dwordx2 s[26:27], s[0:1], 88")
    A("s_waitcnt lgkmcnt(0)")
    srd(4, 20, 16 * 320 * 2)
    srd(8, 22, 128 * 64 * 2)
    srd(12, 24, 192 * 64 * 2)
    srd(16, 26, WS_REC)
    A(f"s_sub_u32 s3, s2, {G}")
    A("s_lshl_b32 s3, s3, 10")
    A("v_add_u32 v1, s3, v0")
    A("v_and_b32 v2, 63, v1")
    A("v_and_b32 v3, 15, v2")
    A("v_lshrrev_b32 v4, 4, v2")
    A("v_cmp_gt_u32 vcc, 1280, v1")
    A("s_and_saveexec_b64 s[28:29], vcc")
    A("v_lshrrev_b32 v5, 6, v1")
    A("v_lshrrev_b32 v6, 2, v5")
    A("v_and_b32 v7, 3, v5")
    A("v_lshlrev_b32 v8, 6, v6")
    A("v_lshl_add_u32 v8, v3, 2, v8")
    A("v_add_u32 v8, v8, v7")
    A("v_lshlrev_b32 v9, 2, v4")
    A("v_mul_u32_u24 v9, 640, v9")
    A("v_lshl_add_u32 v9, v8, 1, v9")
    for kk in range(4):
        A(f"buffer_load_ushort v{10 + kk}, v9, s[4:7], 0 offen offset:{640 * kk}")
    A("s_waitcnt vmcnt(0)")
    A("v_lshl_or_b32 v10, v11, 16, v10")
    A("v_lshl_or_b32 v11, v13, 16, v12")
    A("v_lshlrev_b32 v14, 3, v1")
    A(f"v_add_u32 v14, {WS_FRAD}, v14")
    A("buffer_store_dwordx2 v[10:11], v14, s[16:19], 0 offen")
    A("s_mov_b64 exec, s[28:29]")
    A("v_subrev_u32 v5, 1280, v1")
    A("v_cmp_gt_u32 vcc, 1024, v5")
    A("s_and_saveexec_b64 s[28:29], vcc")
    A("v_lshrrev_b32 v6, 8, v5")
    A("v_bfe_u32 v7, v5, 6, 2")
    A("v_lshlrev_b32 v8, 5, v7")
    A("v_lshl_add_u32 v8, v4, 3, v8")
    A("v_lshlrev_b32 v8, 7, v8")
    A("v_lshl_add_u32 v9, v6, 4, v3")
    A("v_lshl_add_u32 v8, v9, 1, v8")
    for kk in range(8):
        A(f"buffer_load_ushort v{10 + kk}, v8, s[8:11], 0 offen offset:{128 * kk}")
    A("s_waitcnt vmcnt(0)")
    for p in range(4):
        A(f"v_lshl_or_b32 v{20 + p}, v{11 + 2 * p}, 16, v{10 + 2 * p}")
    A("v_lshlrev_b32 v14, 4, v5")
    A(f"v_add_u32 v14, {WS_FW0}, v14")
    A("buffer_store_dwordx4 v[20:23], v14, s[16:19], 0 offen")
    A("s_mov_b64 exec, s[28:29]")
    A("v_subrev_u32 v5, 2304, v1")
    A("v_cmp_gt_u32 vcc, 1536, v5")
    A("s_and_saveexec_b64 s[28:29], vcc")
    A("v_lshrrev_b32 v7, 8, v5")
    A("v_bfe_u32 v6, v5, 6, 2")
    A("v_lshlrev_b32 v8, 5, v7")
    A("v_lshl_add_u32 v8, v4, 3, v8")
    A("v_lshlrev_b32 v8, 7, v8")
    A("v_lshl_add_u32 v9, v6, 4, v3")
    A("v_lshl_add_u32 v8, v9, 1, v8")
    for kk in range(8):
        A(f"buffer_load_ushort v{10 + kk}, v8, s[12:15], 0 offen offset:{128 * kk}")
    A("s_waitcnt vmcnt(0)")
    for p in range(4):
        A(f"v_lshl_or_b32 v{20 + p}, v{11 + 2 * p}, 16, v{10 + 2 * p}")
    A("v_lshlrev_b32 v14, 4, v5")
    A(f"v_add_u32 v14, {WS_FW1}, v14")
    A("buffer_store_dwordx4 v[20:23], v14, s[16:19], 0 offen")
    A("s_mov_b64 exec, s[28:29]")
    L("K1_END")
    A("s_endpgm")
    kd("tp_hist_kernel", 32)


def gen_k2():
    kstart("tp_scatter_kernel")
    A(f"s_cmp_ge_u32 s2, {G}")
    A("s_cbranch_scc1 K2_END")
    A("s_load_dwordx2 s[20:21], s[0:1], 32")
    A("s_load_dwordx2 s[22:23], s[0:1], 24")
    A("s_load_dwordx2 s[24:25], s[0:1], 8")
    A("s_load_dwordx2 s[26:27], s[0:1], 88")
    A("s_waitcnt lgkmcnt(0)")
    srd(4, 20, E * 4)
    srd(8, 22, E * 4)
    srd(12, 24, E * 6)
    srd(16, 26, WS_USED)
    A("v_lshlrev_b32 v1, 2, v0")
    A("v_mov_b32 v2, 0")
    A("v_mov_b32 v3, 0")
    A("v_cmp_gt_u32 vcc, 512, v0")
    A("s_and_saveexec_b64 s[28:29], vcc")
    A("s_cbranch_execz K2_SKIPA")
    for bt in range(G // 16):
        for q in range(16):
            A(f"s_mov_b32 s30, {(bt * 16 + q) * 2048}")
            A(f"buffer_load_dword v{10 + q}, v1, s[16:19], s30 offen")
        A("s_waitcnt vmcnt(0)")
        for q in range(16):
            gp = bt * 16 + q
            A(f"s_cmp_lg_u32 s2, {gp}")
            A(f"s_cbranch_scc1 K2_NS{gp}")
            A("v_mov_b32 v3, v2")
            L(f"K2_NS{gp}")
            A(f"v_add_u32 v2, v2, v{10 + q}")
    A(f"v_cmp_gt_u32 vcc, {NBINS}, v0")
    A("s_nop 1")
    A("v_cndmask_b32 v2, 0, v2, vcc")
    A("v_cndmask_b32 v3, 0, v3, vcc")
    A("v_mov_b32 v4, v2")
    A("s_nop 1")
    for sh in (1, 2, 4, 8):
        A(f"v_add_u32_dpp v4, v4, v4 row_shr:{sh} row_mask:0xf bank_mask:0xf bound_ctrl:0")
        A("s_nop 1")
    A("v_add_u32_dpp v4, v4, v4 row_bcast:15 row_mask:0xa bank_mask:0xf")
    A("s_nop 1")
    A("v_add_u32_dpp v4, v4, v4 row_bcast:31 row_mask:0xc bank_mask:0xf")
    A("s_nop 1")
    A("v_readlane_b32 s31, v4, 63")
    A("v_lshrrev_b32 v5, 6, v0")
    A("v_lshlrev_b32 v5, 2, v5")
    A("v_mov_b32 v6, s31")
    A("ds_write_b32 v5, v6 offset:4096")
    L("K2_SKIPA")
    A("s_mov_b64 exec, s[28:29]")
    A("s_waitcnt lgkmcnt(0)")
    A("s_barrier")
    A("v_cmp_gt_u32 vcc, 512, v0")
    A("s_and_saveexec_b64 s[28:29], vcc")
    A("s_cbranch_execz K2_SKIPB")
    A("v_mov_b32 v5, 0")
    A("ds_read_b128 v[8:11], v5 offset:4096")
    A("ds_read_b128 v[12:15], v5 offset:4112")
    A("v_lshrrev_b32 v6, 6, v0")
    A("s_nop 0")
    A("v_readfirstlane_b32 s32, v6")
    A("s_waitcnt lgkmcnt(0)")
    A("s_mov_b32 s33, 0")
    for m in range(8):
        A(f"v_readfirstlane_b32 s34, v{8 + m}")
        A("s_nop 3")
        A(f"s_cmp_gt_u32 s32, {m}")
        A("s_cselect_b32 s34, s34, 0")
        A("s_add_u32 s33, s33, s34")
    A("v_sub_u32 v4, v4, v2")
    A("v_add_u32 v4, s33, v4")
    A("v_add_u32 v7, v4, v3")
    A("ds_write_b32 v1, v7")
    A("s_cmp_lg_u32 s2, 0")
    A("s_cbranch_scc1 K2_SKIPB")
    A(f"v_cmp_gt_u32 vcc, {NBINS}, v0")
    A("s_and_saveexec_b64 s[34:35], vcc")
    A(f"v_add_u32 v5, {WS_BASE}, v1")
    A("buffer_store_dword v4, v5, s[16:19], 0 offen")
    A(f"v_cmp_eq_u32 vcc, {NBINS - 1}, v0")
    A("s_and_saveexec_b64 s[36:37], vcc")
    A("v_add_u32 v4, v4, v2")
    A("buffer_store_dword v4, v5, s[16:19], 0 offen offset:4")
    L("K2_SKIPB")
    A("s_mov_b64 exec, s[28:29]")
    A("s_waitcnt vmcnt(0) lgkmcnt(0)")
    A("s_barrier")
    A(f"s_mul_i32 s30, s2, {CHUNK}")
    A("v_mov_b32 v5, 1")
    for k in range(10):
        if k == 9:
            A(f"v_cmp_gt_u32 vcc, {CHUNK - 9216}, v0")
            A("s_and_saveexec_b64 s[28:29], vcc")
        A(f"v_add_u32 v6, {1024 * k}, v0")
        A("v_add_u32 v6, s30, v6")
        A("v_lshlrev_b32 v7, 2, v6")
        A("buffer_load_dword v8, v7, s[4:7], 0 offen")
        A("buffer_load_dword v9, v7, s[8:11], 0 offen")
        A("v_mul_u32_u24 v10, 6, v6")
        A("v_and_b32 v11, 0xfffffffc, v10")
        A("buffer_load_dwordx2 v[12:13], v11, s[12:15], 0 offen")
        A("v_and_b32 v10, 3, v10")
        A("v_lshlrev_b32 v10, 3, v10")
        A("s_waitcnt vmcnt(0)")
        A("v_mul_u32_u24 v14, 52429, v8")
        A("v_lshrrev_b32 v14, 20, v14")
        A(f"v_min_u32 v14, {NBINS - 1}, v14")
        A(f"v_mul_u32_u24 v15, {NB}, v14")
        A("v_sub_u32 v15, v8, v15")
        A("v_and_b32 v15, 31, v15")
        A("v_lshlrev_b32 v14, 2, v14")
        A("ds_add_rtn_u32 v16, v14, v5")
        A("v_lshl_or_b32 v20, v6, 5, v15")
        A("v_mov_b32 v21, v9")
        A("v_lshrrev_b64 v[12:13], v10, v[12:13]")
        A("v_mov_b32 v22, v12")
        A("v_and_b32 v23, 0xffff, v13")
        A("s_waitcnt lgkmcnt(0)")
        A("v_lshlrev_b32 v16, 4, v16")
        A(f"v_add_u32 v16, {WS_REC}, v16")
        A("buffer_store_dwordx4 v[20:23], v16, s[16:19], 0 offen")
        A("s_nop 1")
    L("K2_END")
    A("s_endpgm")
    kd("tp_scatter_kernel", 32)


B0 = 16
ACC = 56
D0 = 100
X0 = [140, 172]
AR = [204, 206]
YP = [208, 216]
YU = 224
T0 = 236
V_I16 = 1
V_Q4 = 2
V_KG8 = 3
V_I8 = 4
V_PB = 5
MASK = [40, 42]


def acc(j, t):
    return ACC + t * 4 + j


def load_tile(st):
    t = T0
    A(f"v_add_u32 v{t}, s50, v{V_I16}")
    A(f"v_cmp_gt_u32 s[{MASK[st]}:{MASK[st] + 1}], s51, v{t}")
    A("s_sub_u32 s52, s51, 1")
    A(f"v_min_u32 v{t}, s52, v{t}")
    A(f"v_lshlrev_b32 v{t}, 4, v{t}")
    A(f"ds_read_b32 v{t + 1}, v{t} offset:{L_REC}")
    A(f"v_add_u32 v{t + 2}, s50, v{V_Q4}")
    for r in range(4):
        A(f"v_add_u32 v{t + 3}, {r}, v{t + 2}")
        A(f"v_min_u32 v{t + 3}, s52, v{t + 3}")
        A(f"v_lshlrev_b32 v{t + 3}, 4, v{t + 3}")
        A(f"ds_read_b64 v[{t + 4 + 2 * r}:{t + 5 + 2 * r}], v{t + 3} offset:{L_REC}")
        A(f"ds_read_b64 v[{YP[st] + 2 * r}:{YP[st] + 2 * r + 1}], v{t + 3} offset:{L_REC + 8}")
    A("s_waitcnt lgkmcnt(0)")
    A(f"v_lshrrev_b32 v{t + 1}, 5, v{t + 1}")
    A(f"v_lshlrev_b32 v{t + 1}, 5, v{t + 1}")
    A(f"v_add_u32 v{t + 1}, v{t + 1}, v{V_KG8}")
    if FIXROW:
        A(f"v_mov_b32 v{t + 1}, 0")
    A(f"buffer_load_dwordx2 v[{AR[st]}:{AR[st] + 1}], v{t + 1}, s[8:11], 0 offen")
    for r in range(4):
        A(f"v_lshlrev_b32 v{t + 12}, 9, v{t + 5 + 2 * r}")
        if FIXROW:
            A(f"v_mov_b32 v{t + 12}, 0")
        A(f"v_add_u32 v{t + 12 + r}, v{t + 12}, v{V_I8}")
        for s in range(4):
            xr = X0[st] + r * 8 + s * 2
            A(f"buffer_load_dwordx2 v[{xr}:{xr + 1}], v{t + 12 + r}, s[4:7], 0 offen offset:{128 * s}")


def comp_tile(st):
    a = AR[st]
    A(f"v_cndmask_b32 v{a}, 0, v{a}, s[{MASK[st]}:{MASK[st] + 1}]")
    A(f"v_cndmask_b32 v{a + 1}, 0, v{a + 1}, s[{MASK[st]}:{MASK[st] + 1}]")
    for r in range(4):
        A(f"v_lshlrev_b32 v{YU + 3 * r}, 16, v{YP[st] + 2 * r}")
        A(f"v_and_b32 v{YU + 3 * r + 1}, 0xffff0000, v{YP[st] + 2 * r}")
        A(f"v_lshlrev_b32 v{YU + 3 * r + 2}, 16, v{YP[st] + 2 * r + 1}")
    for half in range(2):
        for k5 in range(5):
            for jj in range(2):
                d = D0 + (k5 * 2 + jj) * 4
                b = B0 + (k5 * 4 + 2 * half + jj) * 2
                if os.environ.get("NOMFMA") != "1":
                    A(f"v_mfma_f32_16x16x16_bf16 v[{d}:{d + 3}], v[{a}:{a + 1}], v[{b}:{b + 1}], 0")
        A("s_nop 7")
        for r in range(4):
            Yx, Yy, Yz = YU + 3 * r, YU + 3 * r + 1, YU + 3 * r + 2
            for jj in range(2 if not NOMATH else 0):
                j = 2 * half + jj
                f0, fx, fy, fz, tt, uu = T0 + 14, T0 + 15, T0 + 16, T0 + 17, T0 + 18, T0 + 19
                for s, dst in enumerate((f0, fx, fy, fz)):
                    xr = X0[st] + r * 8 + s * 2 + half
                    if jj == 0:
                        A(f"v_lshlrev_b32 v{dst}, 16, v{xr}")
                    else:
                        A(f"v_and_b32 v{dst}, 0xffff0000, v{xr}")

                def R(k5):
                    return D0 + (k5 * 2 + jj) * 4 + r
                A(f"v_fmac_f32 v{acc(j, 0)}, v{f0}, v{R(0)}")
                A(f"v_mul_f32 v{tt}, v{fx}, v{Yx}")
                A(f"v_fmac_f32 v{tt}, v{fy}, v{Yy}")
                A(f"v_fmac_f32 v{tt}, v{fz}, v{Yz}")
                A(f"v_fmac_f32 v{acc(j, 1)}, v{tt}, v{R(1)}")
                A(f"v_mul_f32 v{uu}, v{f0}, v{R(2)}")
                A(f"v_fmac_f32 v{acc(j, 2)}, v{uu}, v{Yx}")
                A(f"v_fmac_f32 v{acc(j, 3)}, v{uu}, v{Yy}")
                A(f"v_fmac_f32 v{acc(j, 4)}, v{uu}, v{Yz}")
                A(f"v_fmac_f32 v{acc(j, 5)}, v{fx}, v{R(3)}")
                A(f"v_fmac_f32 v{acc(j, 6)}, v{fy}, v{R(3)}")
                A(f"v_fmac_f32 v{acc(j, 7)}, v{fz}, v{R(3)}")
                A(f"v_mul_f32 v{tt}, v{fz}, v{Yy}")
                A(f"v_fma_f32 v{tt}, -v{fy}, v{Yz}, v{tt}")
                A(f"v_fmac_f32 v{acc(j, 8)}, v{tt}, v{R(4)}")
                A(f"v_mul_f32 v{tt}, v{fx}, v{Yz}")
                A(f"v_fma_f32 v{tt}, -v{fz}, v{Yx}, v{tt}")
                A(f"v_fmac_f32 v{acc(j, 9)}, v{tt}, v{R(4)}")
                A(f"v_mul_f32 v{tt}, v{fy}, v{Yx}")
                A(f"v_fma_f32 v{tt}, -v{fx}, v{Yy}, v{tt}")
                A(f"v_fmac_f32 v{acc(j, 10)}, v{tt}, v{R(4)}")


TERM_OFF = [0, 256, 512, 512 + 768, 512 + 1536, 512 + 256, 512 + 768 + 256, 512 + 1536 + 256,
            512 + 512, 512 + 768 + 512, 512 + 1536 + 512]


def flush(tag):
    for q0 in range(0, 44, 4):
        rs = [ACC + q0 + u for u in range(4)]
        ts = [T0 + 1 + u for u in range(4)]
        for r, t in zip(rs, ts):
            A(f"v_mov_b32 v{t}, v{r}")
        A("s_nop 0")
        for r, t in zip(rs, ts):
            A(f"v_permlane32_swap_b32 v{r}, v{t}")
        for r, t in zip(rs, ts):
            A(f"v_add_f32 v{r}, v{r}, v{t}")
        for r, t in zip(rs, ts):
            A(f"v_mov_b32 v{t}, v{r}")
        A("s_nop 0")
        for r, t in zip(rs, ts):
            A(f"v_permlane16_swap_b32 v{r}, v{t}")
        for r, t in zip(rs, ts):
            A(f"v_add_f32 v{r}, v{r}, v{t}")
    A(f"s_mul_i32 s54, s53, {PSTR}")
    A(f"v_add_u32 v{T0}, s54, v{V_PB}")
    A("s_mov_b64 exec, 0xffff")
    for t in range(11):
        A(f"ds_read_b128 v[{D0 + 4 * (t % 10)}:{D0 + 4 * (t % 10) + 3}], v{T0} offset:{L_P + TERM_OFF[t]}") if t < 10 else None
    A("s_waitcnt lgkmcnt(0)")
    for t in range(10):
        for j in range(4):
            A(f"v_add_f32 v{acc(j, t)}, v{acc(j, t)}, v{D0 + 4 * t + j}")
    A(f"ds_read_b128 v[{D0}:{D0 + 3}], v{T0} offset:{L_P + TERM_OFF[10]}")
    A("s_waitcnt lgkmcnt(0)")
    for j in range(4):
        A(f"v_add_f32 v{acc(j, 10)}, v{acc(j, 10)}, v{D0 + j}")
    for t in range(11):
        A(f"ds_write_b128 v{T0}, v[{acc(0, t)}:{acc(0, t) + 3}] offset:{L_P + TERM_OFF[t]}")
    A("s_mov_b64 exec, -1")
    A("s_waitcnt lgkmcnt(0)")
    for q in range(44):
        A(f"v_mov_b32 v{ACC + q}, 0")


def gen_main():
    kstart("tp_main_kernel")
    A(f"s_cmp_ge_u32 s2, {NBINS}")
    A("s_cbranch_scc1 M_END")
    A("s_load_dwordx2 s[20:21], s[0:1], 0")
    A("s_load_dwordx2 s[22:23], s[0:1], 16")
    A("s_load_dwordx2 s[24:25], s[0:1], 88")
    A("s_load_dwordx2 s[26:27], s[0:1], 72")
    A("s_waitcnt lgkmcnt(0)")
    srd(4, 20, N * 512)
    srd(8, 22, E * 32)
    srd(12, 24, WS_USED)
    srd(16, 26, N * 512)
    stamp(0)
    A("s_lshl_b32 s3, s2, 2")
    A(f"s_add_u32 s3, s3, {WS_BASE}")
    A("s_load_dwordx2 s[28:29], s[24:25], s3")
    A("v_and_b32 v6, 63, v0")
    A(f"v_and_b32 v{V_I16}, 15, v6")
    A("v_lshrrev_b32 v7, 4, v6")
    A(f"v_lshlrev_b32 v{V_Q4}, 2, v7")
    A(f"v_lshlrev_b32 v{V_KG8}, 3, v7")
    A(f"v_lshlrev_b32 v{V_I8}, 3, v{V_I16}")
    A(f"v_lshlrev_b32 v{V_PB}, 4, v{V_I16}")
    A("v_lshlrev_b32 v7, 3, v6")
    for t in range(20):
        A(f"v_add_u32 v8, {WS_FRAD + t * 512}, v7")
        A(f"buffer_load_dwordx2 v[{B0 + 2 * t}:{B0 + 2 * t + 1}], v8, s[12:15], 0 offen")
    A("v_lshlrev_b32 v7, 4, v0")
    for q in range(4):
        A(f"v_mov_b32 v{D0 + q}, 0")
    nz = (NB * PSTR) // 16
    for k in range(0, (nz + 255) // 256):
        if (k + 1) * 256 > nz:
            A(f"v_cmp_gt_u32 vcc, {nz - k * 256}, v0")
            A("s_and_saveexec_b64 s[30:31], vcc")
        A(f"ds_write_b128 v7, v[{D0}:{D0 + 3}] offset:{L_P + k * 4096}")
    A("s_mov_b64 exec, s[30:31]")
    for j in range(4):
        for t in range(11):
            A(f"v_mov_b32 v{acc(j, t)}, 0")
    A("v_lshrrev_b32 v7, 6, v0")
    A("s_nop 0")
    A("v_readfirstlane_b32 s44, v7")
    A("s_waitcnt lgkmcnt(0)")
    stamp(1)
    L("M_PASS")
    A("s_sub_u32 s45, s29, s28")
    A(f"s_min_u32 s45, s45, {CAP}")
    A("v_cmp_gt_u32 vcc, 32, v0")
    A("s_and_saveexec_b64 s[30:31], vcc")
    A("v_lshlrev_b32 v7, 2, v0")
    A("v_mov_b32 v8, 0")
    A(f"ds_write_b32 v7, v8 offset:{L_CNT}")
    A("s_mov_b64 exec, s[30:31]")
    A("s_waitcnt lgkmcnt(0)")
    A("s_barrier")
    for k in range(6):
        A(f"v_add_u32 v7, {256 * k}, v0")
        A("v_add_u32 v8, s28, v7")
        A("v_lshlrev_b32 v8, 4, v8")
        A(f"v_add_u32 v8, {WS_REC}, v8")
        A(f"buffer_load_dwordx4 v[{D0 + 4 * k}:{D0 + 4 * k + 3}], v8, s[12:15], 0 offen")
    A("v_mov_b32 v9, 1")
    for k in range(6):
        A(f"s_waitcnt vmcnt({5 - k})")
        A(f"v_add_u32 v7, {256 * k}, v0")
        A("v_cmp_gt_u32 vcc, s45, v7")
        A("s_and_saveexec_b64 s[30:31], vcc")
        A(f"v_and_b32 v8, 31, v{D0 + 4 * k}")
        A("v_lshlrev_b32 v8, 2, v8")
        A(f"ds_add_rtn_u32 v{D0 + 24 + k}, v8, v9 offset:{L_CNT}")
        A("s_mov_b64 exec, s[30:31]")
    A("s_waitcnt lgkmcnt(0)")
    A("s_barrier")
    A("v_and_b32 v7, 31, v0")
    A("v_lshlrev_b32 v7, 2, v7")
    A(f"ds_read_b32 v8, v7 offset:{L_CNT}")
    A("s_waitcnt lgkmcnt(0)")
    A("s_mov_b32 s46, 0")
    A("v_mov_b32 v9, 0")
    for m in range(NB + 1):
        A(f"v_writelane_b32 v9, s46, {m}")
        if m < NB:
            A(f"v_readlane_b32 s47, v8, {m}")
            A("s_nop 3")
            A("s_add_u32 s46, s46, s47")
    for k in range(6):
        A(f"v_and_b32 v10, 31, v{D0 + 4 * k}")
        A("v_lshlrev_b32 v10, 2, v10")
        A("ds_bpermute_b32 v11, v10, v9")
        A(f"v_add_u32 v7, {256 * k}, v0")
        A("v_cmp_gt_u32 vcc, s45, v7")
        A("s_and_saveexec_b64 s[30:31], vcc")
        A("s_waitcnt lgkmcnt(0)")
        A(f"v_add_u32 v11, v11, v{D0 + 24 + k}")
        A("v_lshlrev_b32 v11, 4, v11")
        A(f"ds_write_b128 v11, v[{D0 + 4 * k}:{D0 + 4 * k + 3}] offset:{L_REC}")
        A("s_mov_b64 exec, s[30:31]")
    A("s_waitcnt lgkmcnt(0)")
    A("s_barrier")
    stamp(2)
    if STAMP:
        for k in range(6):
            A(f"s_mov_b32 s{86+k}, 0")
        A("s_mov_b32 s84, s64")
    A("s_mul_i32 s48, s44, 5")
    A("s_add_u32 s49, s48, 5")
    L("M_FIND0")
    A("s_cmp_ge_u32 s48, s49")
    A("s_cbranch_scc1 M_WAVEDONE")
    A("v_readlane_b32 s50, v9, s48")
    A("s_add_u32 s47, s48, 1")
    A("v_readlane_b32 s51, v9, s47")
    A("s_nop 3")
    A("s_cmp_lt_u32 s50, s51")
    A("s_cbranch_scc1 M_FOUND0")
    A("s_add_u32 s48, s48, 1")
    A("s_branch M_FIND0")
    L("M_FOUND0")
    load_tile(0)
    A("s_mov_b32 s57, s50")
    A("s_mov_b32 s58, s51")
    A("s_mov_b32 s59, s48")
    for st in range(2):
        nx = 1 - st
        L(f"M_LOOP{st}")
        A("s_add_u32 s50, s57, 16")
        A("s_mov_b32 s51, s58")
        A("s_cmp_lt_u32 s50, s58")
        A(f"s_cbranch_scc1 M_HASNEXT{st}")
        L(f"M_FIND{st}_N")
        A("s_add_u32 s48, s48, 1")
        A("s_cmp_ge_u32 s48, s49")
        A(f"s_cbranch_scc1 M_NONEXT{st}")
        A("v_readlane_b32 s50, v9, s48")
        A("s_add_u32 s47, s48, 1")
        A("v_readlane_b32 s51, v9, s47")
        A("s_nop 3")
        A("s_cmp_lt_u32 s50, s51")
        A(f"s_cbranch_scc0 M_FIND{st}_N")
        L(f"M_HASNEXT{st}")
        seg(0)
        load_tile(nx)
        seg(1)
        A("s_waitcnt vmcnt(17)")
        seg(2)
        A("s_mov_b32 s56, 1")
        A(f"s_branch M_COMP{st}")
        L(f"M_NONEXT{st}")
        A("s_waitcnt vmcnt(0)")
        A("s_mov_b32 s56, 0")
        L(f"M_COMP{st}")
        comp_tile(st)
        seg(3)
        A("s_add_u32 s47, s57, 16")
        A("s_cmp_lt_u32 s47, s58")
        A(f"s_cbranch_scc1 M_NOFLUSH{st}")
        A("s_mov_b32 s53, s59")
        flush(f"f{st}")
        L(f"M_NOFLUSH{st}")
        seg(4)
        A("s_cmp_eq_u32 s56, 0")
        A("s_cbranch_scc1 M_WAVEDONE")
        A("s_mov_b32 s57, s50")
        A("s_mov_b32 s58, s51")
        A("s_mov_b32 s59, s48")
        if st == 1:
            A("s_branch M_LOOP0")
    L("M_WAVEDONE")
    A("s_waitcnt vmcnt(0) lgkmcnt(0)")
    A("s_barrier")
    A("s_add_u32 s28, s28, s45")
    A("s_cmp_lt_u32 s28, s29")
    A("s_cbranch_scc1 M_PASS")
    stamp(3)
    A("v_and_b32 v6, 63, v0")
    A("v_lshlrev_b32 v7, 4, v6")
    for s in range(4):
        A(f"s_lshl_b32 s47, s44, 2")
        A(f"s_add_u32 s47, s47, {s}")
        A("s_lshl_b32 s47, s47, 10")
        A(f"s_add_u32 s47, s47, {WS_FW0}")
        A(f"buffer_load_dwordx4 v[{16 + 4 * s}:{19 + 4 * s}], v7, s[12:15], s47 offen")
    for s in range(6):
        A(f"s_lshl_b32 s47, s44, 10")
        A(f"s_add_u32 s47, s47, {WS_FW1 + s * 4096}")
        A(f"buffer_load_dwordx4 v[{32 + 4 * s}:{35 + 4 * s}], v7, s[12:15], s47 offen")
    A("s_waitcnt vmcnt(0)")
    A(f"s_mul_i32 s46, s2, {NB}")
    for tile in range(2):
        A(f"v_add_u32 v7, {16 * tile}, v{V_I16}")
        A(f"v_min_u32 v8, {NB - 1}, v7")
        A(f"v_mul_u32_u24 v8, {PSTR}, v8")
        A(f"v_lshl_add_u32 v8, v{V_Q4}, 3, v8")
        DA = 56
        for q in range(16):
            A(f"v_mov_b32 v{DA + q}, 0")
        for s in range(4):
            A(f"ds_read_b128 v[100:103], v8 offset:{L_P + 128 * s}")
            A(f"ds_read_b128 v[104:107], v8 offset:{L_P + 128 * s + 16}")
            A("s_waitcnt lgkmcnt(0)")
            for p in range(4):
                A(f"v_cvt_pk_bf16_f32 v{108 + p}, v{100 + 2 * p}, v{101 + 2 * p}")
            A("s_nop 1")
            A(f"v_mfma_f32_16x16x32_bf16 v[{DA}:{DA + 3}], v[{16 + 4 * s}:{19 + 4 * s}], v[108:111], v[{DA}:{DA + 3}]")
        for jx in range(3):
            for s in range(6):
                off = L_P + 512 + jx * 768 + 128 * s
                A(f"ds_read_b128 v[100:103], v8 offset:{off}")
                A(f"ds_read_b128 v[104:107], v8 offset:{off + 16}")
                A("s_waitcnt lgkmcnt(0)")
                for p in range(4):
                    A(f"v_cvt_pk_bf16_f32 v{108 + p}, v{100 + 2 * p}, v{101 + 2 * p}")
                A("s_nop 1")
                d = DA + 4 + 4 * jx
                A(f"v_mfma_f32_16x16x32_bf16 v[{d}:{d + 3}], v[{32 + 4 * s}:{35 + 4 * s}], v[108:111], v[{d}:{d + 3}]")
        A("s_nop 7")
        A("s_nop 3")
        A(f"v_cmp_gt_u32 vcc, {NB}, v7")
        A("s_and_saveexec_b64 s[30:31], vcc")
        A("s_mov_b32 s47, 0xbfb8aa3b")
        for r in range(4):
            A(f"v_mul_f32 v{112 + r}, s47, v{DA + r}")
            A(f"v_exp_f32 v{112 + r}, v{112 + r}")
            A("s_nop 0")
            A(f"v_add_f32 v{112 + r}, 1.0, v{112 + r}")
            A(f"v_rcp_f32 v{112 + r}, v{112 + r}")
            A("s_nop 0")
        A("v_add_u32 v9, s46, v7")
        A("v_lshlrev_b32 v9, 9, v9")
        A("s_lshl_b32 s47, s44, 5")
        A("v_add_u32 v9, s47, v9")
        A(f"v_lshl_add_u32 v9, v{V_Q4}, 1, v9")
        A(f"v_cvt_pk_bf16_f32 v116, v{DA}, v{DA + 1}")
        A(f"v_cvt_pk_bf16_f32 v117, v{DA + 2}, v{DA + 3}")
        A("buffer_store_dwordx2 v[116:117], v9, s[16:19], 0 offen")
        for jx in range(3):
            d = DA + 4 + 4 * jx
            for r in range(4):
                A(f"v_mul_f32 v{d + r}, v{d + r}, v{112 + r}")
            A(f"v_cvt_pk_bf16_f32 v{118 + 2 * jx}, v{d}, v{d + 1}")
            A(f"v_cvt_pk_bf16_f32 v{119 + 2 * jx}, v{d + 2}, v{d + 3}")
            A(f"buffer_store_dwordx2 v[{118 + 2 * jx}:{119 + 2 * jx}], v9, s[16:19], 0 offen offset:{128 + 128 * jx}")
        A("s_mov_b64 exec, s[30:31]")
    if STAMP:
        stamp(4)
        A("s_cmp_lg_u32 s2, 0")
        A("s_cbranch_scc1 M_END")
        A("s_load_dwordx2 s[20:21], s[0:1], 80")
        A("s_waitcnt lgkmcnt(0)")
        srd(4, 20, 256)
        A("v_mov_b32 v1, 0")
        for k in range(5):
            A(f"v_mov_b32 v2, s{60+2*k}")
            A(f"buffer_store_dword v2, v1, s[4:7], 0 offen offset:{4*k}")
        for k in range(5):
            A(f"v_mov_b32 v2, s{86+k}")
            A(f"buffer_store_dword v2, v1, s[4:7], 0 offen offset:{20+4*k}")
    L("M_END")
    A("s_endpgm")
    kd("tp_main_kernel", 256)


def main():
    hdr = open('standalone__tensor_product_equiv_equiformer__graph.s.ref').read().split('\n')
    for line in hdr:
        if line.startswith('; @launch'):
            break
        out.append(line)
    out.append(f"; @launch kernel=tp_hist_kernel grid=({G + 4},1,1) block=(1024,1,1) lds=8192")
    out.append(f"; @launch kernel=tp_scatter_kernel grid=({G},1,1) block=(1024,1,1) lds=8192")
    out.append(f"; @launch kernel=tp_main_kernel grid=({NBINS},1,1) block=(256,1,1) lds={L_TOT}")
    out.append('.amdgcn_target "amdgcn-amd-amdhsa--gfx950"')
    out.append(".text")
    gen_k1()
    gen_k2()
    gen_main()
    open(sys.argv[1], 'w').write("\n".join(out) + "\n")


main()
```
